```python
import torch

def _softmax(x, axis=-1):
    return torch.softmax(x, dim=axis)
def _gelu(x):
    return torch.nn.functional.gelu(x, approximate="tanh")
def _silu(x):
    return torch.nn.functional.silu(x)
def _sigmoid(x):
    return torch.sigmoid(x)
def _layernorm(x, axis=-1, eps=1e-5):
    m = x.mean(dim=axis, keepdim=True)
    v = x.var(dim=axis, keepdim=True, unbiased=False)
    return (x - m) / torch.sqrt(v + eps)
def _scatter_add(tgt, idx, src, axis=0):
    return tgt.clone().index_add_(axis, idx, src)
def _segment_sum(src, seg, n):
    out = torch.zeros((n,) + src.shape[1:], dtype=src.dtype)
    return out.index_add_(0, seg, src)
def _pad(x, pw):
    flat = tuple(v for pair in reversed(pw) for v in pair)
    return torch.nn.functional.pad(x, flat)

kernel_name = 'gated_mix__linear_kernel_hedgehog__dense_activation_gelu__prompt'

def setup_inputs():

    _w = (lambda a: (lambda t: t.to(torch.bfloat16) if t.is_floating_point() else t)(torch.as_tensor(a)))
    def _A_setup():
        B, S, D, H = 1, 2048, 512, 32
        Dh = D // H
        return {
            "x": _w((lambda *s: torch.randn(*s, dtype=torch.bfloat16) * 0.05)(B, S, D)),
            "wqkv": _w((lambda *s: torch.randn(*s, dtype=torch.bfloat16) * 0.8)(D, 3 * D)),
            "w_phi": _w((lambda *s: torch.randn(*s, dtype=torch.bfloat16) * 0.8)(H, Dh, Dh) * (Dh ** -0.5)),
            "wo": _w((lambda *s: torch.randn(*s, dtype=torch.bfloat16) * 0.05)(D, D)),
        }
    _A_in = _A_setup()

    def _B_setup():
        B, S, D, F = 1, 2048, 512, 1376
        return {
            "x": _w((lambda *s: torch.randn(*s, dtype=torch.bfloat16) * 0.05)(B, S, D)),
            "w1": _w((lambda *s: torch.randn(*s, dtype=torch.bfloat16) * 3.2)(D, F) * (D ** -0.5)),
            "b1": _w((lambda *s: torch.randn(*s, dtype=torch.bfloat16) * 3.2)(F) * 0.01),
            "w2": _w((lambda *s: torch.randn(*s, dtype=torch.bfloat16) * 0.2)(F, D) * (F ** -0.5)),
            "b2": _w((lambda *s: torch.randn(*s, dtype=torch.bfloat16) * 0.4)(D) * 0.01),
        }
    _B_in = _B_setup()

    return {
        "A_x": _A_in["x"],
        "A_wqkv": _A_in["wqkv"],
        "A_w_phi": _A_in["w_phi"],
        "A_wo": _A_in["wo"],
        "B_x": _B_in["x"],
        "B_w1": _B_in["w1"],
        "B_b1": _B_in["b1"],
        "B_w2": _B_in["w2"],
        "B_b2": _B_in["b2"],
        "gate_w": _w((lambda *s: torch.randn(*s, dtype=torch.bfloat16) * 0.05)(512) * 16.0),
    }

def reference(A_x, A_wqkv, A_w_phi, A_wo, B_x, B_w1, B_b1, B_w2, B_b2, gate_w):
    def _A_ref(x, wqkv, w_phi, wo):
        B, S, D = x.shape
        H = 32; Dh = D // H
        qkv = (lambda x, *d: x.permute(*d))((x @ wqkv).reshape(B, S, 3, H, Dh), 2, 0, 3, 1, 4)
        q, k, v = qkv[0], qkv[1], qkv[2]
        pq = torch.einsum("bhsd,hdf->bhsf", q, w_phi)
        pk = torch.einsum("bhsd,hdf->bhsf", k, w_phi)
        phi_q = torch.concatenate([_softmax(pq, axis=-1), _softmax(-pq, axis=-1)], axis=-1)
        phi_k = torch.concatenate([_softmax(pk, axis=-1), _softmax(-pk, axis=-1)], axis=-1)
        kv = torch.einsum("bhsf,bhsd->bhfd", phi_k, v)
        z  = torch.einsum("bhsf->bhf", phi_k)
        num = torch.einsum("bhqf,bhfd->bhqd", phi_q, kv)
        den = torch.einsum("bhqf,bhf->bhq", phi_q, z)[..., None] + 1e-6
        o = num / den
        return (lambda x, *d: x.permute(*d))(o, 0, 2, 1, 3).reshape(B, S, D) @ wo

    def _B_ref(x, w1, b1, w2, b2):
        h = torch.einsum("bsd,df->bsf", x, w1) + b1
        h = _gelu(h)
        return torch.einsum("bsf,fd->bsd", h, w2) + b2

    x = A_x
    g = _sigmoid((x * gate_w).sum(-1, keepdims=True))
    a = _A_ref(x, A_wqkv, A_w_phi, A_wo)
    b = _B_ref(x, B_w1, B_b1, B_w2, B_b2)
    return g * a + (1 - g) * b
```

```python
import sys, struct
KNAME = "gated_mix__linear_kernel_hedgehog__dense_activation_gelu__prompt_kernel"

def f2u(x):
    return struct.unpack("<I", struct.pack("<f", x))[0]

class Cfg:
    stamps = False
    spin_max = 1 << 20

A2_TB = 120 * 1024
KVP_OFF = 0x800000
FLG_OFF = 0x900000
NONCE_OFF = 0x1000000
STAMP_OFF = 0x8000000
SLOT = 40960
L_PHI = 81920
L_V = 114688
L_KVF = 131072
L_TRASH = 135424
L_GATE = 155648
L_ZERO = 156672
L_WPHI = 157696
OOB = 0x40000000

sX, sWQKV, sWPHI, sWO, sBX, sW1, sB1, sW2 = 4, 6, 8, 10, 12, 14, 16, 18
sB2, sGATE, sOUT, sDBG, sWS = 20, 22, 24, 26, 28
SRD_A = 32
SRD_B = 36
SRD_WS = 40
SRD_T = 44
sOffA, sOffB, sIncA, sIncB = 48, 49, 50, 51
sWave, sR, sIdx, sIsF = 52, 53, 54, 55
sRT, sCT = 56, 57
sSlotR, sSlotW = 58, 59
sCnt = 60
sT0, sT1, sT2, sT3 = 61, 62, 63, 64
sTag = 65
sC1, sC2 = 66, 68
sL2E = 70
sMask = 72
sW10K = 74
sStart = 75
sSpin = 76
sA2 = 77
sSt = 78

vACC = 0
vGACC = 96
vF = [100, 132]
vOff = 164
vXb, vWb, vX, vW, vG = 174, 175, 176, 177, 178
vLane, vL16 = 179, 180
vCG = 182
vTag = 184
vT = 186
vWPH = 200
vPQ = 216
vBb0, vBb1 = 248, 249
vA0, vA1 = 250, 251
vB2v = 252
vTid = 254


class Prog:
    def __init__(self):
        self.items = []
    def __call__(self, s):
        for line in s.split("\n"):
            line = line.strip()
            if line:
                self.items.append(("i", line, None))
    def vm(self, s, tag=None):
        self.items.append(("vm", s, tag))
    def waitvm(self, tag):
        self.items.append(("wait", None, tag))
    def extend(self, other):
        self.items += other.items
    def resolve(self, pending):
        out = []
        seq = list(pending)
        for kind, s, tag in self.items:
            if kind == "i":
                out.append(s)
                if s.startswith("s_waitcnt") and "vmcnt(0)" in s:
                    seq = []
            elif kind == "vm":
                out.append(s)
                seq.append(tag)
            else:
                idx = [k for k, t in enumerate(seq) if t == tag]
                if idx:
                    n = len(seq) - 1 - idx[-1]
                    assert n <= 63
                    out.append(f"s_waitcnt vmcnt({n})")
                    seq = seq[idx[-1] + 1:]
        return out, seq


def merge(fg, bg, every, start=0):
    out = Prog()
    b = list(bg.items)
    k = 0
    for n, it in enumerate(fg.items):
        out.items.append(it)
        if n >= start and (n - start) % every == every - 1 and k < len(b):
            out.items.append(b[k]); k += 1
    if k < len(b) and out.items and out.items[-1][1] and "m0" in out.items[-1][1].split(",")[0]:
        out.items.append(("i", "s_nop 0", None))
    while k < len(b):
        out.items.append(b[k])
        if b[k][1] and "m0" in b[k][1].split(",")[0]:
            out.items.append(("i", "s_nop 0", None))
        k += 1
    return out


def vr(a, n):
    return f"v[{a}:{a+n-1}]"
def ar(a, n):
    return f"a[{a}:{a+n-1}]"
def sr(a, n):
    return f"s[{a}:{a+n-1}]"

STAMPSETS = {
  1: {"start":0, "pro":1, "gemm":2, "f_gelu":3, "f_flag":4, "a_kepi":3, "a_kvpub":4, "a_qepi":5, "a_poll":6, "a_gath":7, "p2":8, "hpoll":9, "opoll":10, "end":11},
  2: {"start":0, "gemm":1, "f_b0":2, "f_b1":3, "f_b2":4, "f_b3":5, "f_b4":6, "f_gelu":7, "f_dma4":8, "f_flag":9, "p2":10, "end":11,
      "a_addr":2, "a_vw":3, "a_k0":4, "a_k1":5, "a_k2":6, "a_k3":7, "a_kepi":8, "a_kvpub":9},
  3: {"start":0, "a_kvpub":1, "a_qtr":2, "a_q0":3, "a_q1":4, "a_q2":5, "a_qepi":6, "a_gath":7, "a_kvf":8, "a_ost":9, "a_flag":10, "end":11,
      "opoll":None},
  4: {"start":0, "ka":1, "c0":2, "c1":3, "pro":4, "hpoll":5, "opoll":6, "p2mm":7, "p2w":8, "p2r":9, "p2st":10, "end":11},
}
def stamp(p, name):
    if Cfg.stamps:
        k = STAMPSETS[Cfg.stamps].get(name)
        if k is not None:
            p(f"s_memtime {sr(sSt+2*k, 2)}")


def srd(p, d, base, nrec, bias=0):
    if bias:
        p(f"s_sub_u32 s{d}, s{base}, {bias}")
        p(f"s_subb_u32 s{d+1}, s{base+1}, 0")
    else:
        p(f"s_mov_b32 s{d}, s{base}")
        p(f"s_mov_b32 s{d+1}, s{base+1}")
    p(f"s_mov_b32 s{d+2}, {nrec + bias}")
    p(f"s_mov_b32 s{d+3}, 0x20000")


def csel(p, d, a, b):
    p(f"s_mov_b32 s{d}, {b}")
    p(f"s_cselect_b32 s{d}, {a}, s{d}")


def dma_chunk(tag, m0_expr):
    p = Prog()
    p(m0_expr)
    for t in range(10):
        s, so = (SRD_A, sOffA) if t < 4 else (SRD_B, sOffB)
        if t in (4, 8):
            p("s_add_u32 m0, m0, 4096")
        p.vm(f"buffer_load_dwordx4 v{vOff+t}, {sr(s,4)}, s{so} offen offset:{(t%4)*1024} lds", tag)
    return p


def b2_tr(c, slot):
    p = Prog()
    for k in range(5):
        i = 5 * c + k
        for u in range(2):
            vb = vBb0 if u == 0 else vBb1
            for jh in range(2):
                p(f"ds_read_b64_tr_b16 {ar(8*i+4*u+2*jh,2)}, v{vb} offset:{slot*SLOT + k*2048 + jh*1024}")
    return p


def b2_dma(c, slot):
    p = Prog()
    if c == 4:
        srd(p, SRD_B, sWO, 512 * 1024, bias=32768)
        p(f"s_lshl_b32 s{sOffB}, s{sWave}, 17")
    if c == 5:
        srd(p, SRD_A, sWO, 512 * 1024, bias=32768)
        p(f"s_add_u32 s{sOffB}, s{sOffB}, {48*1024 + 32768}")
        p(f"s_mov_b32 s{sOffA}, s{sOffB}")
    p.extend(dma_chunk(f"B{c}", f"s_add_u32 m0, s{sW10K}, {slot*SLOT}"))
    if c < 4:
        p(f"s_add_u32 s{sOffA}, s{sOffA}, 81920")
        p(f"s_add_u32 s{sOffB}, s{sOffB}, 81920")
    return p


def spin(p, name, load, nlanes):
    p(f"s_mov_b32 s{sSpin}, 0")
    p(f"s_mov_b64 exec, {(1 << nlanes) - 1}")
    p(f"L_{name}:")
    p(load)
    p(f"s_add_u32 s{sSpin}, s{sSpin}, 1")
    p(f"s_waitcnt vmcnt(0)")
    p(f"v_cmp_ne_u32 vcc, s{sTag}, v{vT}")
    p(f"s_cbranch_vccz L_{name}_x")
    p(f"s_cmp_lt_u32 s{sSpin}, {Cfg.spin_max}")
    p(f"s_cbranch_scc1 L_{name}")
    p(f"L_{name}_x:")
    p("s_mov_b64 exec, -1")


def softmax16(p, src, dst, t):
    p(f"v_max3_f32 v{t}, v{src}, v{src+1}, v{src+2}")
    p(f"v_max3_f32 v{t+1}, v{src+3}, v{src+4}, v{src+5}")
    p(f"v_max3_f32 v{t}, v{t}, v{src+6}, v{src+7}")
    p(f"v_max3_f32 v{t+1}, v{t+1}, v{src+8}, v{src+9}")
    p(f"v_max3_f32 v{t}, v{t}, v{src+10}, v{src+11}")
    p(f"v_max3_f32 v{t+1}, v{t+1}, v{src+12}, v{src+13}")
    p(f"v_max3_f32 v{t}, v{t}, v{src+14}, v{src+15}")
    p(f"v_max_f32 v{t}, v{t}, v{t+1}")
    p(f"v_mul_f32 v{t}, {hex(f2u(-1.4426950408889634))}, v{t}")
    for j in range(8):
        p(f"v_pk_fma_f32 {vr(src+2*j,2)}, {vr(src+2*j,2)}, {sr(sL2E,2)}, {vr(t,2)} op_sel_hi:[1,1,0]")
    for j in range(16):
        p(f"v_exp_f32 v{src+j}, v{src+j}")
    p(f"v_pk_add_f32 {vr(t,2)}, {vr(src,2)}, {vr(src+2,2)}")
    p(f"v_pk_add_f32 {vr(t+2,2)}, {vr(src+4,2)}, {vr(src+6,2)}")
    p(f"v_pk_add_f32 {vr(t,2)}, {vr(t,2)}, {vr(src+8,2)}")
    p(f"v_pk_add_f32 {vr(t+2,2)}, {vr(t+2,2)}, {vr(src+10,2)}")
    p(f"v_pk_add_f32 {vr(t,2)}, {vr(t,2)}, {vr(src+12,2)}")
    p(f"v_pk_add_f32 {vr(t+2,2)}, {vr(t+2,2)}, {vr(src+14,2)}")
    p(f"v_pk_add_f32 {vr(t,2)}, {vr(t,2)}, {vr(t+2,2)}")
    p(f"v_add_f32 v{t}, v{t}, v{t+1}")
    p(f"v_rcp_f32 v{t}, v{t}")
    p("s_nop 0")
    for j in range(8):
        p(f"v_pk_mul_f32 {vr(src+2*j,2)}, {vr(src+2*j,2)}, {vr(t,2)} op_sel_hi:[1,0]")
    for j in range(8):
        p(f"v_cvt_pk_bf16_f32 v{dst+j}, v{src+2*j}, v{src+2*j+1}")


def gelu_block(p, a, tmp, dst):
    for j in range(8):
        p(f"v_pk_mul_f32 {vr(tmp+2*j,2)}, {vr(a+2*j,2)}, {vr(a+2*j,2)}")
    for j in range(8):
        p(f"v_pk_fma_f32 {vr(tmp+2*j,2)}, {vr(tmp+2*j,2)}, {sr(sC2,2)}, {vr(vT,2)} op_sel_hi:[1,1,0]")
    for j in range(8):
        p(f"v_pk_mul_f32 {vr(tmp+2*j,2)}, {vr(tmp+2*j,2)}, {vr(a+2*j,2)}")
    for j in range(16):
        p(f"v_exp_f32 v{tmp+j}, v{tmp+j}")
    for j in range(8):
        p(f"v_pk_fma_f32 {vr(tmp+2*j,2)}, {vr(tmp+2*j,2)}, {vr(vCG,2)}, {vr(vCG,2)} op_sel_hi:[1,0,0]")
    for j in range(16):
        p(f"v_rcp_f32 v{tmp+j}, v{tmp+j}")
    for j in range(8):
        p(f"v_pk_mul_f32 {vr(tmp+2*j,2)}, {vr(tmp+2*j,2)}, {vr(a+2*j,2)}")
    for j in range(8):
        p(f"v_cvt_pk_bf16_f32 v{dst+j}, v{tmp+2*j}, v{tmp+2*j+1}")


def set_flag(p, tag):
    p.waitvm(tag)
    p(f"v_mov_b32 v{vT+1}, 0")
    p(f"s_lshl_b32 s{sT0}, s{sR}, 4")
    p(f"s_lshl_b32 s{sT1}, s{sIsF}, 3")
    p(f"s_add_u32 s{sT0}, s{sT0}, s{sT1}")
    p(f"s_add_u32 s{sT0}, s{sT0}, s{sIdx}")
    p(f"s_lshl_b32 s{sT0}, s{sT0}, 2")
    p(f"s_add_u32 s{sT0}, s{sT0}, s{sWave}")
    p(f"s_lshl_b32 s{sT0}, s{sT0}, 7")
    p(f"s_add_u32 s{sT0}, s{sT0}, {FLG_OFF}")
    p("s_mov_b64 exec, 1")
    p.vm(f"buffer_store_dword v{vTag}, v{vT+1}, {sr(SRD_WS,4)}, s{sT0} offen sc1", "flag")
    p("s_mov_b64 exec, -1")


def build():
    P = []
    p = Prog()
    p("s_cmp_ge_u32 s2, 256")
    p("s_cbranch_scc1 L_exit")
    if Cfg.stamps:
        for i in range(2, 24):
            p(f"s_mov_b32 s{sSt+i}, 0")
    stamp(p, "start")
    p(f"s_load_dwordx16 {sr(4,16)}, s[0:1], 0")
    p(f"s_load_dwordx8 {sr(20,8)}, s[0:1], 64")
    p(f"s_load_dwordx2 {sr(28,2)}, s[0:1], 96")
    p(f"v_mov_b32 v{vTid}, v0")
    p(f"v_lshrrev_b32 v1, 6, v0")
    p(f"v_and_b32 v{vLane}, 63, v0")
    p(f"v_readfirstlane_b32 s{sWave}, v1")
    p(f"v_lshlrev_b32 v{vL16}, 4, v{vLane}")
    p(f"s_getpc_b64 {sr(SRD_T,2)}")
    p("L_pc:")
    p(f"s_mov_b32 s{SRD_T+2}, L_codeend-L_pc")
    p(f"s_mov_b32 s{SRD_T+3}, 0x20000")
    p(f"s_lshr_b32 s{sT0}, s2, 3")
    p(f"s_lshl_b32 s{sT1}, s{sT0}, 10")
    p(f"v_lshlrev_b32 v1, 7, v0")
    p(f"v_cmp_gt_u32 vcc, 8, v0")
    p(f"v_mov_b32 v2, {OOB}")
    p(f"s_nop 0")
    p(f"v_cndmask_b32 v1, v2, v1, vcc")
    p.vm(f"buffer_load_dword v{vT+8}, v1, {sr(SRD_T,4)}, s{sT1} offen", "misc")
    p(f"s_and_b32 s{sT1}, s2, 1")
    p(f"s_lshl_b32 s{sT1}, s{sT1}, 3")
    p(f"s_and_b32 s{sR}, s{sT0}, 7")
    p(f"s_add_u32 s{sR}, s{sR}, s{sT1}")
    p(f"s_bfe_u32 s{sIsF}, s2, 0x10006")
    p(f"s_and_b32 s{sIdx}, s2, 6")
    p(f"s_lshr_b32 s{sT1}, s2, 7")
    p(f"s_add_u32 s{sIdx}, s{sIdx}, s{sT1}")
    p(f"s_and_b32 s{sRT}, s2, 7")
    p(f"s_lshl_b32 s{sRT}, s{sRT}, 2")
    p(f"s_and_b32 s{sT1}, s{sT0}, 3")
    p(f"s_add_u32 s{sRT}, s{sRT}, s{sT1}")
    p(f"s_lshr_b32 s{sCT}, s{sT0}, 2")
    p(f"s_mul_i32 s{sW10K}, s{sWave}, 10240")
    p(f"s_lshr_b32 s{sT1}, s{sIdx}, 1")
    p(f"s_mul_i32 s{sStart}, s{sT1}, 11")
    p(f"s_cmp_lt_u32 s{sIdx}, 6")
    p(f"s_cselect_b32 s{sT1}, 6, 5")
    p(f"s_and_b32 s{sT2}, s{sIdx}, 1")
    p(f"s_mul_i32 s{sT1}, s{sT1}, s{sT2}")
    p(f"s_add_u32 s{sStart}, s{sStart}, s{sT1}")
    p(f"s_lshl_b32 s{sT2}, s{sIdx}, 7")
    p(f"s_lshl_b32 s{sT3}, s{sStart}, 6")
    p(f"s_cmp_eq_u32 s{sIsF}, 0")
    csel(p, sT0, 3072, 2752)
    csel(p, sT1, 1024, 128)
    p(f"s_cselect_b32 s{sT2}, s{sT2}, s{sT3}")
    p(f"s_add_u32 s{sT2}, s{sT2}, 4096")
    p(f"s_lshl_b32 s{sIncB}, s{sT0}, 6")
    p(f"s_mov_b32 s{sIncA}, 128")
    p(f"s_mov_b32 s{sOffA}, 0")
    p(f"s_mov_b32 s{sOffB}, 0")
    p(f"s_lshl_b32 s{sT3}, s{sR}, 2")
    p(f"s_add_u32 s{sT3}, s{sT3}, s{sWave}")
    p(f"s_mul_i32 s{sA2}, s{sT3}, {A2_TB}")
    p(f"s_lshl_b32 s{sT3}, s{sT3}, 15")
    p(f"v_lshrrev_b32 v1, 3, v{vLane}")
    p(f"v_lshlrev_b32 v1, 10, v1")
    p(f"v_lshrrev_b32 v2, 4, v{vLane}")
    p(f"v_and_b32 v3, 7, v{vLane}")
    p(f"v_xor_b32 v2, v2, v3")
    p(f"v_lshl_add_u32 v1, v2, 4, v1")
    p(f"v_add_u32 v{vOff}, s{sT3}, v1")
    p(f"v_xor_b32 v1, 64, v{vOff}")
    p(f"v_add_u32 v{vOff+1}, {8192-1024}, v1")
    p(f"v_add_u32 v{vOff+2}, {2*(8192-1024)}, v{vOff}")
    p(f"v_add_u32 v{vOff+3}, {3*(8192-1024)}, v1")
    p(f"v_bfe_u32 v1, v{vLane}, 2, 3")
    p(f"s_lshl_b32 s{sT3}, s{sWave}, 4")
    p(f"v_add_u32 v2, s{sT3}, v1")
    p(f"v_mul_lo_u32 v2, v2, s{sT0}")
    p(f"v_lshrrev_b32 v3, 5, v{vLane}")
    p(f"v_and_b32 v4, 3, v{vLane}")
    p(f"v_lshlrev_b32 v4, 4, v4")
    p(f"v_lshl_add_u32 v4, v3, 6, v4")
    p(f"v_add3_u32 v2, v2, v4, s{sT2}")
    p(f"s_lshl_b32 s{sT0}, s{sT0}, 3")
    p(f"s_sub_u32 s{sT1}, s{sT1}, 1024")
    p(f"v_mov_b32 v{vOff+4}, v2")
    p(f"v_add_u32 v{vOff+5}, s{sT1}, v2")
    p(f"v_add_u32 v{vOff+6}, s{sT1}, v{vOff+5}")
    p(f"v_add_u32 v2, s{sT0}, v2")
    p(f"v_subrev_u32 v{vOff+7}, 3072, v2")
    p(f"v_add_u32 v2, 1024, v2")
    p(f"v_add_u32 v{vOff+8}, s{sT1}, v2")
    p(f"v_add_u32 v{vOff+9}, s{sT1}, v{vOff+8}")
    p(f"s_and_b32 s{sT0}, s{sIdx}, 1")
    p(f"s_cmp_ge_u32 s{sIdx}, 6")
    p(f"s_cselect_b32 s{sT0}, 1, s{sT0}")
    p(f"s_and_b32 s{sT0}, s{sT0}, s{sIsF}")
    p(f"s_lshl_b32 s{sT0}, s{sT0}, 30")
    p(f"v_mul_lo_u32 v5, v3, s{sT0}")
    p(f"v_or_b32 v{vOff+6}, v5, v{vOff+6}")
    p(f"v_or_b32 v{vOff+9}, v5, v{vOff+9}")
    p(f"s_lshl_b32 s{sT0}, s{sCT}, 7")
    p(f"v_lshl_add_u32 v4, v1, 10, v4")
    p(f"v_add_u32 v{vT+2}, s{sT0}, v4")
    p(f"v_and_b32 v6, 31, v{vLane}")
    p(f"v_lshlrev_b32 v6, 1, v6")
    p(f"v_lshl_add_u32 v6, v3, 30, v6")
    p(f"s_lshl_b32 s{sT3}, s{sStart}, 6")
    p("s_waitcnt lgkmcnt(0)")
    stamp(p, "ka")
    srd(p, SRD_A, sX, 2048 * 1024)
    p(f"s_cmp_eq_u32 s{sIsF}, 0")
    p(f"s_cselect_b32 s{SRD_B}, s{sWQKV}, s{sW1}")
    p(f"s_cselect_b32 s{SRD_B+1}, s{sWQKV+1}, s{sW1+1}")
    csel(p, SRD_B+2, 512*3072+4096, 512*2752+4096)
    p(f"s_cselect_b32 s{SRD_T+2}, 0, 2752")
    p(f"s_mov_b32 s{SRD_B+3}, 0x20000")
    p(f"s_sub_u32 s{SRD_B}, s{SRD_B}, 4096")
    p(f"s_subb_u32 s{SRD_B+1}, s{SRD_B+1}, 0")
    d = dma_chunk("c0", f"s_add_u32 m0, s{sW10K}, {1*SLOT}")
    e = Prog(); p.extend(merge(e, d, 1))
    p(f"s_add_u32 s{sOffA}, s{sOffA}, s{sIncA}")
    p(f"s_add_u32 s{sOffB}, s{sOffB}, s{sIncB}")
    stamp(p, "c0")
    p(f"s_mov_b32 s{SRD_T}, s{sB1}")
    p(f"s_mov_b32 s{SRD_T+1}, s{sB1+1}")
    for b in range(6):
        p.vm(f"buffer_load_ushort v{vF[1]+8+4*b}, v6, {sr(SRD_T,4)}, s{sT3} offen offset:{64*b}", "misc")
    p(f"s_cmp_lt_u32 s{sWave}, 2")
    p(f"s_cselect_b32 s{SRD_T}, s{sGATE}, s{sWPHI}")
    p(f"s_cselect_b32 s{SRD_T+1}, s{sGATE+1}, s{sWPHI+1}")
    csel(p, SRD_T+2, 1024, 16384)
    p(f"s_lshl_b32 s{sT0}, s{sIdx}, 11")
    p(f"s_cmp_lt_u32 s{sWave}, 2")
    p(f"s_cselect_b32 s{sT0}, 0, s{sT0}")
    p(f"s_and_b32 s{sT1}, s{sWave}, 1")
    p(f"s_lshl_b32 s{sT1}, s{sT1}, 10")
    p(f"s_add_u32 s{sT0}, s{sT0}, s{sT1}")
    p(f"s_lshl_b32 s{sT1}, s{sWave}, 10")
    p(f"s_add_u32 m0, s{sT1}, {L_GATE}")
    srd(p, SRD_WS, sWS, 0x10000000)
    p.vm(f"buffer_load_dwordx4 v{vL16}, {sr(SRD_T,4)}, s{sT0} offen lds", "misc")
    p(f"s_or_b32 s{sT0}, s2, s{sWave}")
    p(f"s_cmp_lg_u32 s{sT0}, 0")
    p("s_cbranch_scc1 L_nononce")
    p(f"v_mov_b32 v1, 0")
    p(f"s_mov_b32 s{sT0}, {NONCE_OFF}")
    p("s_mov_b64 exec, 1")
    p(f"buffer_load_dword v2, v1, {sr(SRD_WS,4)}, s{sT0} offen sc1")
    p("s_waitcnt vmcnt(0)")
    p("v_add_u32 v2, 1, v2")
    p(f"v_and_b32 v4, {hex(0xffffffff ^ 0x40004000)}, v2")
    p(f"v_or_b32 v4, 0x2000, v4")
    p(f"global_store_dword v1, v4, {sr(sDBG,2)} sc1")
    p(f"buffer_store_dword v2, v1, {sr(SRD_WS,4)}, s{sT0} offen sc1")
    p("s_mov_b64 exec, -1")
    p("L_nononce:")
    d = dma_chunk("c1", f"s_add_u32 m0, s{sW10K}, {2*SLOT}")
    e = Prog(); p.extend(merge(e, d, 1))
    p(f"s_add_u32 s{sOffA}, s{sOffA}, s{sIncA}")
    p(f"s_add_u32 s{sOffB}, s{sOffB}, s{sIncB}")
    stamp(p, "c1")
    p(f"v_and_b32 v1, 31, v{vLane}")
    p(f"v_bfe_u32 v2, v{vLane}, 1, 3")
    p(f"v_xor_b32 v2, v2, v3")
    p(f"v_lshlrev_b32 v2, 4, v2")
    p(f"v_lshl_add_u32 v2, v1, 7, v2")
    p(f"v_add_u32 v{vXb}, s{sW10K}, v2")
    p(f"v_bfe_u32 v1, v{vLane}, 2, 2")
    p(f"v_bfe_u32 v2, v{vLane}, 4, 1")
    p(f"v_and_b32 v4, 3, v{vLane}")
    p(f"v_lshlrev_b32 v4, 3, v4")
    p(f"v_lshl_add_u32 v4, v2, 5, v4")
    p(f"v_lshl_add_u32 v4, v1, 6, v4")
    p(f"v_mul_u32_u24 v5, 3072, v3")
    p(f"v_add_u32 v{vWb}, v5, v4")
    p(f"v_lshl_add_u32 v4, v3, 8, v4")
    p(f"s_and_b32 s{sT0}, s{sWave}, 1")
    p(f"s_lshl_b32 s{sT0}, s{sT0}, 9")
    p(f"s_add_u32 s{sT0}, s{sT0}, s{sW10K}")
    p(f"v_add_u32 v{vBb0}, s{sT0}, v4")
    p(f"v_xor_b32 v{vBb1}, 512, v{vBb0}")
    p(f"v_bfe_u32 v1, v{vLane}, 2, 1")
    p(f"v_xor_b32 v1, v1, v2")
    p(f"v_lshlrev_b32 v1, 10, v1")
    p(f"v_lshl_add_u32 v1, v3, 4, v1")
    p(f"v_add_u32 v{vG}, {L_GATE}, v1")
    c1 = -2.0 * 0.7978845608028654 * 1.4426950408889634
    c2 = c1 * 0.044715
    p(f"s_mov_b32 s{sC1}, {hex(f2u(c1))}")
    p(f"s_mov_b32 s{sC2}, {hex(f2u(c2))}")
    p(f"s_mov_b32 s{sC2+1}, {hex(f2u(c2))}")
    p(f"s_mov_b32 s{sL2E}, {hex(f2u(1.4426950408889634))}")
    p(f"s_mov_b32 s{sL2E+1}, {hex(f2u(1.4426950408889634))}")
    for r in range(100):
        p(f"v_mov_b32 v{r}, 0")
    p(f"v_mov_b32 v{vF[1]}, 0x3f80")
    for r in range(1, 8):
        p(f"v_mov_b32 v{vF[1]+r}, 0")
    for b in range(6):
        for r in range(1, 4):
            p(f"v_mov_b32 v{vF[1]+8+4*b+r}, 0")
    p(f"v_mov_b32 v{vT+1}, 0")
    p(f"s_mov_b32 s{sSlotR}, {1*SLOT}")
    p(f"s_mov_b32 s{sSlotW}, 0")
    p(f"s_mov_b32 s{sCnt}, 0")
    stamp(p, "pro")
    P += p.resolve([])[0]

    def mfmas(fs):
        L = [f"v_mfma_f32_32x32x16_bf16 {vr(vACC+16*b,16)}, {vr(vF[fs]+8+4*b,4)}, {vr(vF[fs],4)}, {vr(vACC+16*b,16)}" for b in range(6)]
        L.append(f"v_mfma_f32_16x16x32_bf16 {vr(vGACC,4)}, {vr(vF[fs]+4,4)}, {vr(vF[fs],4)}, {vr(vGACC,4)}")
        return L
    def reads(fs, s):
        L = [f"ds_read_b128 {vr(vF[fs],4)}, v{vX}"]
        for b in range(6):
            o = s * 10240 + 4096 + (b >> 1) * 1024 + (b & 1) * 512
            L.append(f"ds_read_b64_tr_b16 {vr(vF[fs]+8+4*b,2)}, v{vW} offset:{o}")
            L.append(f"ds_read_b64_tr_b16 {vr(vF[fs]+8+4*b+2,2)}, v{vW} offset:{o+256}")
        L.append(f"ds_read_b128 {vr(vF[fs]+4,4)}, v{vG} offset:{s*32}")
        return L
    p = Prog()
    p(".p2align 3")
    p("L_loop:")
    p(f"s_cmp_lg_u32 s{sCnt}, 6")
    p("s_cbranch_scc1 L_noswap")
    srd(p, SRD_A, sW2, 1376 * 1024)
    srd(p, SRD_B, sW2, 1376 * 1024)
    p(f"s_mul_i32 s{sOffA}, s{sWave}, {22*16*1024}")
    p(f"s_mov_b32 s{sOffB}, s{sOffA}")
    p(f"s_mov_b32 s{sIncA}, 81920")
    p(f"s_mov_b32 s{sIncB}, 81920")
    for t in range(10):
        p(f"v_add_u32 v{vOff+t}, {t*8192-(t%4)*1024}, v{vT+2}")
    p(f"global_load_dword v{vTag}, v{vT+1}, {sr(sDBG,2)} sc1")
    p(f"s_waitcnt vmcnt(11)")
    p("s_branch L_swapped")
    p("L_noswap:")
    p("s_waitcnt vmcnt(10)")
    p("L_swapped:")
    p(f"v_add_u32 v{vX}, s{sSlotR}, v{vXb}")
    p(f"v_add_u32 v{vW}, s{sSlotR}, v{vWb}")
    p("s_waitcnt lgkmcnt(0)")
    p("s_barrier")
    dm = [it[1] for it in dma_chunk("x", f"s_add_u32 m0, s{sW10K}, s{sSlotW}").items]
    dgaps = {0: [dm[0:1], dm[1:2], dm[2:3]], 1: [dm[3:4], dm[4:6], dm[6:7]], 2: [dm[7:8], dm[8:9], dm[9:11]], 3: [dm[11:12], dm[12:13], []]}
    for s in range(4):
        cur = (s + 1) & 1
        M = mfmas(cur); R = reads(s & 1, s)
        rg = [R[0:3], R[3:6], R[6:9], R[9:12], R[12:14], [], []]
        if s > 0:
            p("s_waitcnt lgkmcnt(0)")
        for g in range(7):
            p(M[g])
            for x in rg[g]:
                p(x)
            if g == 1 and s < 3:
                p(f"v_xor_b32 v{vX}, {(32, 96, 32)[s]}, v{vX}")
            if g >= 4:
                for x in dgaps[s][g - 4]:
                    p(x)
            if s == 3 and g == 5:
                p(f"v_add_u32 v{vG}, 128, v{vG}")
                p(f"s_add_u32 s{sOffA}, s{sOffA}, s{sIncA}")
                p(f"s_add_u32 s{sOffB}, s{sOffB}, s{sIncB}")
            if s == 3 and g == 6:
                p(f"s_mov_b32 s{sSlotW}, s{sSlotR}")
                p(f"s_add_u32 s{sSlotR}, s{sSlotR}, {SLOT}")
                p(f"s_cmp_eq_u32 s{sSlotR}, {3*SLOT}")
                p(f"s_cselect_b32 s{sSlotR}, 0, s{sSlotR}")
                p(f"s_add_u32 s{sCnt}, s{sCnt}, 1")
                p(f"s_cmp_lt_u32 s{sCnt}, 8")
    p("s_cbranch_scc1 L_loop")
    p("s_waitcnt lgkmcnt(0)")
    p("s_barrier")
    M = mfmas(1)
    p(M[6])
    for g in (2, 3, 0, 1, 4, 5):
        p(M[g])
    stamp(p, "gemm")
    p(f"v_readfirstlane_b32 s{sTag}, v{vTag}")
    p(f"s_mov_b32 s{sSpin}, 0")
    p("L_tagspin:")
    p(f"s_cmp_lg_u32 s{sTag}, 0")
    p("s_cbranch_scc1 L_tagok")
    p(f"global_load_dword v{vTag}, v{vT+1}, {sr(sDBG,2)} sc1")
    p(f"s_add_u32 s{sSpin}, s{sSpin}, 1")
    p("s_waitcnt vmcnt(0)")
    p(f"v_readfirstlane_b32 s{sTag}, v{vTag}")
    p(f"s_cmp_lt_u32 s{sSpin}, {Cfg.spin_max}")
    p("s_cbranch_scc1 L_tagspin")
    p("L_tagok:")
    p(f"s_cmp_eq_u32 s{sIsF}, 0")
    p(f"s_cselect_b32 s{sT0}, {hex(f2u(-1.4426950408889634))}, s{sL2E}")
    p(f"v_mul_f32 v{vCG}, s{sT0}, v{vGACC}")
    p(f"v_exp_f32 v{vCG}, v{vCG}")
    p(f"s_cmp_eq_u32 s{sIsF}, 0")
    p(f"v_add_f32 v{vCG}, 1.0, v{vCG}")
    p(f"v_min_f32 v{vCG}, {hex(f2u(1e30))}, v{vCG}")
    p("s_cbranch_scc1 L_att")
    P += p.resolve([])[0]
    pend0 = ["B0"] * 10 + ["B1"] * 10

    p = Prog()
    p(f"v_mov_b32 v{vT}, s{sC1}")
    p(f"s_lshl_b32 s{sT2}, s{sStart}, 11")
    p(f"s_add_u32 s{sT2}, s{sT2}, s{sA2}")
    p("s_nop 7")
    tmp = vF[0]; dsts = [vF[1], vF[1] + 8]
    bgs = {}
    bg = Prog(); bg.waitvm("B0"); bg.extend(b2_tr(0, 0)); bgs[0] = bg
    bg = Prog(); bg("s_waitcnt lgkmcnt(0)"); bg.extend(b2_dma(2, 0)); bgs[1] = bg
    bg = Prog(); bg.waitvm("B1"); bg.extend(b2_tr(1, 1)); bgs[2] = bg
    bg = Prog(); bg("s_waitcnt lgkmcnt(0)"); bg.extend(b2_dma(3, 1)); bgs[3] = bg
    bg = Prog(); bg.waitvm("B2"); bg.extend(b2_tr(2, 0)); bgs[4] = bg
    for b in range(5):
        f = Prog()
        gelu_block(f, vACC + 16 * b, tmp, dsts[b & 1])
        f = merge(f, bgs[b], 3)
        p.extend(f)
        for u in range(2):
            p.vm(f"buffer_store_dwordx4 {vr(dsts[b&1]+4*u,4)}, v{vL16}, {sr(SRD_WS,4)}, s{sT2} offen offset:{u*1024} sc1", "H")
        p(f"s_add_u32 s{sT2}, s{sT2}, 2048")
        stamp(p, f"f_b{b}")
    d5 = dsts[1]
    p(f"s_cmp_eq_u32 s{sIdx}, 7")
    p("s_cbranch_scc1 L_biasblk")
    p(f"s_and_b32 s{sT0}, s{sIdx}, 1")
    p(f"s_cmp_ge_u32 s{sIdx}, 6")
    p(f"s_cselect_b32 s{sT0}, 1, s{sT0}")
    p(f"s_cmp_eq_u32 s{sT0}, 0")
    p(f"s_cselect_b32 s{sT2}, s{sT2}, {OOB}")
    p("s_cbranch_scc0 L_blk5st")
    gelu_block(p, vACC + 80, tmp, d5)
    p("s_branch L_blk5st")
    p("L_biasblk:")
    p(f"v_rcp_f32 v{tmp}, v{vCG}")
    for r in range(1, 8):
        p(f"v_mov_b32 v{d5+r}, 0")
    p(f"v_cvt_pk_bf16_f32 v{tmp+1}, v{tmp}, v{tmp}")
    p(f"v_lshlrev_b32 v{tmp+1}, 16, v{tmp+1}")
    p(f"v_sub_f32 v{tmp+1}, v{tmp}, v{tmp+1}")
    p(f"v_cvt_pk_bf16_f32 v{d5}, v{tmp}, v{tmp+1}")
    p(f"v_cmp_gt_u32 vcc, 32, v{vLane}")
    p("s_nop 1")
    p(f"v_cndmask_b32 v{d5}, 0, v{d5}, vcc")
    p("L_blk5st:")
    for u in range(2):
        p.vm(f"buffer_store_dwordx4 {vr(d5+4*u,4)}, v{vL16}, {sr(SRD_WS,4)}, s{sT2} offen offset:{u*1024} sc1", "H")
    stamp(p, "f_gelu")
    p("s_waitcnt lgkmcnt(0)")
    e = Prog(); p.extend(merge(e, b2_dma(4, 0), 1))
    stamp(p, "f_dma4")
    set_flag(p, "H")
    stamp(p, "f_flag")
    p.waitvm("B3"); p.extend(b2_tr(3, 1))
    p("s_waitcnt lgkmcnt(0)")
    e = Prog(); p.extend(merge(e, b2_dma(5, 1), 1))
    p.waitvm("B4"); p.extend(b2_tr(4, 0))
    p.waitvm("B5"); p.extend(b2_tr(5, 1))
    p("s_branch L_phase2")
    P += p.resolve(pend0)[0]

    p = Prog()
    p("L_att:")
    t0 = vT
    p(f"v_lshrrev_b32 v{t0}, 5, v{vLane}")
    p(f"v_bfe_u32 v{t0+1}, v{vLane}, 2, 2")
    p(f"v_lshl_add_u32 v{t0+2}, v{t0}, 2, v{t0+1}")
    p(f"v_bfe_u32 v{t0+3}, v{vLane}, 4, 1")
    p(f"v_bfe_u32 v{t0+4}, v{vLane}, 1, 1")
    p(f"v_lshl_add_u32 v{t0+5}, v{t0+3}, 1, v{t0+4}")
    p(f"v_lshlrev_b32 v{t0+6}, 3, v{t0+5}")
    p(f"v_lshl_add_u32 v{t0+6}, v{t0+2}, 5, v{t0+6}")
    p(f"v_add_u32 v{t0+6}, {L_WPHI}, v{t0+6}")
    for hd in range(4):
        p(f"ds_read_b64_tr_b16 {vr(vWPH+4*hd,2)}, v{t0+6} offset:{hd*512}")
        p(f"ds_read_b64_tr_b16 {vr(vWPH+4*hd+2,2)}, v{t0+6} offset:{hd*512+256}")
    p(f"v_lshrrev_b32 v{t0+7}, 1, v{t0+2}")
    p(f"v_and_b32 v{t0+8}, 1, v{vLane}")
    p(f"v_lshl_add_u32 v{t0+9}, v{t0+8}, 1, v{t0+3}")
    p(f"v_xor_b32 v{t0+9}, v{t0+9}, v{t0+7}")
    p(f"v_lshlrev_b32 v{t0+9}, 4, v{t0+9}")
    p(f"v_lshl_add_u32 v{t0+9}, v{t0+4}, 3, v{t0+9}")
    p(f"v_lshl_add_u32 v{t0+9}, v{t0+2}, 6, v{t0+9}")
    p(f"s_lshl_b32 s{sT0}, s{sWave}, 13")
    p(f"s_add_u32 s{sT0}, s{sT0}, {L_PHI}")
    p(f"v_add_u32 v{t0+9}, s{sT0}, v{t0+9}")
    p(f"s_and_b32 s{sT0}, s{sWave}, 1")
    p(f"s_lshl_b32 s{sT0}, s{sT0}, 1")
    p(f"v_add_u32 v{t0+10}, s{sT0}, v{t0+8}")
    p(f"v_xor_b32 v{t0+10}, v{t0+10}, v{t0+7}")
    p(f"v_lshlrev_b32 v{t0+10}, 4, v{t0+10}")
    p(f"v_lshl_add_u32 v{t0+10}, v{t0+4}, 3, v{t0+10}")
    p(f"v_lshl_add_u32 v{t0+10}, v{t0+2}, 6, v{t0+10}")
    p(f"s_lshr_b32 s{sT0}, s{sWave}, 1")
    p(f"s_lshl_b32 s{sT0}, s{sT0}, 13")
    p(f"s_add_u32 s{sT0}, s{sT0}, {L_V}")
    p(f"v_add_u32 v{t0+10}, s{sT0}, v{t0+10}")
    p(f"v_and_b32 v{t0+11}, 31, v{vLane}")
    p(f"v_lshlrev_b32 v{t0+11}, 6, v{t0+11}")
    p(f"s_lshl_b32 s{sT0}, s{sWave}, 11")
    p(f"s_add_u32 s{sT0}, s{sT0}, {L_PHI}")
    p(f"v_add_u32 v{t0+11}, s{sT0}, v{t0+11}")
    p(f"v_bfe_u32 v{t0+1}, v{vLane}, 1, 2")
    p(f"v_lshlrev_b32 v{t0+2}, 1, v{t0}")
    p(f"v_xor_b32 v{t0+2}, v{t0+2}, v{t0+1}")
    p(f"v_lshl_add_u32 v{t0+12}, v{t0+2}, 4, v{t0+11}")
    p(f"v_xor_b32 v{t0+2}, v{t0}, v{t0+1}")
    p(f"v_lshl_add_u32 v{t0+13}, v{t0+2}, 4, v{t0+11}")
    p(f"v_xor_b32 v{t0+11}, 16, v{t0+12}")
    p(f"v_xor_b32 v{t0+8}, 32, v{t0+13}")
    p(f"v_bfe_u32 v{t0+7}, v{vLane}, 2, 1")
    p(f"v_mul_u32_u24 v{t0+7}, 0x8000, v{t0+7}")
    p(f"v_lshl_or_b32 v{t0+7}, v{t0+7}, 16, v{t0+7}")
    p("s_waitcnt lgkmcnt(0)")
    for r in range(16):
        p(f"v_xor_b32 v{vWPH+r}, v{t0+7}, v{vWPH+r}")
    stamp(p, "a_addr")
    PK = vF[0]
    def feature_mfmas(p, blk0):
        for hd in range(4):
            a = vACC + 16 * (blk0 + (hd >> 1)) + 8 * (hd & 1)
            for j in range(4):
                p(f"v_cvt_pk_bf16_f32 v{a+j}, v{a+2*j}, v{a+2*j+1}")
        p("s_nop 1")
        for hd in range(4):
            a = vACC + 16 * (blk0 + (hd >> 1)) + 8 * (hd & 1)
            p(f"v_mfma_f32_32x32x16_bf16 {vr(PK+16*hd,16)}, {vr(vWPH+4*hd,4)}, {vr(a,4)}, 0")
    feature_mfmas(p, 2)
    for hd in range(4):
        a = vACC + 16 * (4 + (hd >> 1)) + 8 * (hd & 1)
        for j in range(4):
            p(f"v_cvt_pk_bf16_f32 v{a+j}, v{a+2*j}, v{a+2*j+1}")
        p(f"ds_write_b128 v{(t0+13) if (hd&1)==0 else (t0+8)}, {vr(a,4)} offset:{L_V-L_PHI + (hd>>1)*8192}")
    stamp(p, "a_vw")
    bgs = {}
    bg = Prog(); bgs[0] = bg
    bg = Prog(); bg.waitvm("B0"); bg.extend(b2_tr(0, 0)); bgs[1] = bg
    bg = Prog(); bg("s_waitcnt lgkmcnt(0)"); bg.extend(b2_dma(2, 0)); bgs[2] = bg
    bg = Prog(); bgs[3] = bg
    for hd in range(4):
        f = Prog()
        dst = vACC + 32 + 8 * hd
        softmax16(f, PK + 16 * hd, dst, t0)
        f(f"ds_write_b128 v{t0+12}, {vr(dst,4)} offset:{hd*8192}")
        f(f"ds_write_b128 v{t0+11}, {vr(dst+4,4)} offset:{hd*8192}")
        p.extend(merge(f, bgs[hd], 3))
        stamp(p, f"a_k{hd}")
    ZA = vACC + 64
    p(f"v_bfe_u32 v{t0}, v{vLane}, 4, 1")
    p(f"v_bfe_u32 v{t0+1}, v{vLane}, 3, 1")
    p(f"v_cmp_eq_u32 vcc, v{t0}, v{t0+1}")
    p(f"v_mov_b32 v{t0}, 0x3f803f80")
    p("s_waitcnt lgkmcnt(0)")
    for r in range(4):
        p(f"v_cndmask_b32 v{ZA+r}, 0, v{t0}, vcc")
    p("s_barrier")
    stamp(p, "a_kepi")
    KVD = vACC + 32; ZD = vACC + 48
    FR = PK
    for half in range(2):
        for ks in range(4 * half, 4 * half + 4):
            if ks % 4 == 3:
                p("s_waitcnt lgkmcnt(8)")
            for jh in range(2):
                p(f"ds_read_b64_tr_b16 {vr(FR+8*ks+2*jh,2)}, v{t0+9} offset:{ks*1024+jh*512}")
                p(f"ds_read_b64_tr_b16 {vr(FR+8*ks+4+2*jh,2)}, v{t0+10} offset:{ks*1024+jh*512}")
        p("s_waitcnt lgkmcnt(0)")
        for ks in range(4 * half, 4 * half + 4):
            c = "0" if ks == 0 else vr(KVD, 16)
            p(f"v_mfma_f32_32x32x16_bf16 {vr(KVD,16)}, {vr(FR+8*ks,4)}, {vr(FR+8*ks+4,4)}, {c}")
            c = "0" if ks == 0 else vr(ZD, 4)
            p(f"v_mfma_f32_16x16x32_bf16 {vr(ZD,4)}, {vr(ZA,4)}, {vr(FR+8*ks,4)}, {c}")
    p(f"v_and_b32 v{t0}, 15, v{vLane}")
    p(f"v_lshrrev_b32 v{t0+1}, 5, v{vLane}")
    p(f"v_lshl_add_u32 v{t0}, v{t0+1}, 4, v{t0}")
    p(f"v_lshlrev_b32 v{t0}, 4, v{t0}")
    p(f"v_bfe_u32 v{t0+1}, v{vLane}, 4, 1")
    p(f"v_lshl_or_b32 v{t0+2}, v{t0+1}, 30, v{t0}")
    p(f"v_mul_u32_u24 v{t0+1}, 1536, v{t0+1}")
    p(f"v_add_u32 v{t0+9}, v{t0+1}, v{t0}")
    p(f"s_lshl_b32 s{sT2}, s{sIdx}, 2")
    p(f"s_add_u32 s{sT2}, s{sT2}, s{sWave}")
    p(f"s_mul_i32 s{sT2}, s{sT2}, {16*1536}")
    p(f"s_add_u32 s{sT2}, s{sT2}, {KVP_OFF}")
    p(f"s_mul_i32 s{sT0}, s{sR}, 1536")
    p(f"s_add_u32 s{sT0}, s{sT0}, s{sT2}")
    GR = vACC + 52
    for j in range(8):
        p(f"v_cvt_pk_bf16_f32 v{GR + (j//3)*4 + j%3}, v{KVD+2*j}, v{KVD+2*j+1}")
    p(f"v_cvt_pk_bf16_f32 v{t0+3}, v{ZD}, v{ZD}")
    p(f"v_lshlrev_b32 v{t0+3}, 16, v{t0+3}")
    p(f"v_sub_f32 v{t0+3}, v{ZD}, v{t0+3}")
    p(f"v_cvt_pk_bf16_f32 v{GR+10}, v{ZD}, v{t0+3}")
    for g in range(3):
        p(f"v_mov_b32 v{GR+4*g+3}, s{sTag}")
    for g in range(3):
        p.vm(f"buffer_store_dwordx4 {vr(GR+4*g,4)}, v{t0+2}, {sr(SRD_WS,4)}, s{sT0} offen offset:{g*512} sc1", "kvp")
    stamp(p, "a_kvpub")
    feature_mfmas(p, 0)
    p.waitvm("B1"); p.extend(b2_tr(1, 1))
    stamp(p, "a_qtr")
    bgs = {}
    bg = Prog(); bg("s_waitcnt lgkmcnt(0)"); bg.extend(b2_dma(3, 1)); bgs[0] = bg
    bg = Prog(); bg.waitvm("B2"); bg.extend(b2_tr(2, 0)); bgs[1] = bg
    bg = Prog(); bg("s_waitcnt lgkmcnt(0)"); bg.extend(b2_dma(4, 0)); bgs[2] = bg
    bg = Prog(); bgs[3] = bg
    for hd in range(4):
        f = Prog()
        softmax16(f, PK + 16 * hd, vPQ + 8 * hd, t0)
        p.extend(merge(f, bgs[hd], 3))
        stamp(p, f"a_q{hd}")
    stamp(p, "a_qepi")
    SEL = vACC + 96 - 96 + 0
    SEL = vF[1] + 28
    p(f"v_lshrrev_b32 v{t0}, 5, v{vLane}")
    p(f"v_bfe_u32 v{t0+1}, v{vLane}, 3, 1")
    p(f"v_cmp_eq_u32 vcc, v{t0}, v{t0+1}")
    p(f"v_and_b32 v{t0+2}, 1, v{vLane}")
    p(f"v_lshlrev_b32 v{t0+2}, 4, v{t0+2}")
    p(f"v_mov_b32 v{t0+3}, 0x3f80")
    p(f"v_lshlrev_b32 v{t0+2}, v{t0+2}, v{t0+3}")
    p(f"v_cndmask_b32 v{t0+2}, 0, v{t0+2}, vcc")
    p(f"v_bfe_u32 v{t0+3}, v{vLane}, 1, 2")
    for r in range(4):
        p(f"v_cmp_eq_u32 vcc, {r}, v{t0+3}")
        p("s_nop 1")
        p(f"v_cndmask_b32 v{SEL+r}, 0, v{t0+2}, vcc")
    p(f"s_mul_i32 s{sT0}, s{sWave}, 1088")
    p(f"s_add_u32 s{sT0}, s{sT0}, {L_KVF}")
    p(f"v_and_b32 v{t0+4}, 15, v{vLane}")
    p(f"v_lshl_add_u32 v{t0+5}, v{t0+4}, 1, v{t0}")
    p(f"v_lshlrev_b32 v{t0+5}, 5, v{t0+5}")
    p(f"v_add_u32 v{t0+5}, s{sT0}, v{t0+5}")
    p(f"v_bfe_u32 v{t0+6}, v{vLane}, 4, 1")
    p(f"v_lshl_add_u32 v{t0+10}, v{t0+6}, 3, v{t0+5}")
    p(f"v_cmp_eq_u32 vcc, 0, v{t0+6}")
    p(f"v_mov_b32 v{t0+7}, {L_TRASH}")
    p(f"v_bfe_u32 v{t0+1}, v{vLane}, 2, 1")
    p(f"v_cndmask_b32 v{t0+11}, v{t0+7}, v{t0+5}, vcc")
    p(f"v_bfe_u32 v{t0+2}, v{vLane}, 3, 1")
    p(f"v_lshl_add_u32 v{t0+2}, v{t0}, 1, v{t0+2}")
    p(f"v_and_b32 v{t0+3}, 3, v{vLane}")
    p(f"v_lshl_add_u32 v{t0+2}, v{t0+2}, 2, v{t0+3}")
    p(f"v_lshlrev_b32 v{t0+2}, 1, v{t0+2}")
    p(f"v_lshl_add_u32 v{t0+2}, v{t0+1}, 5, v{t0+2}")
    p(f"s_add_u32 s{sT0}, s{sT0}, 1024")
    p(f"v_add_u32 v{t0+2}, s{sT0}, v{t0+2}")
    p(f"v_cndmask_b32 v{t0+12}, v{t0+2}, v{t0+7}, vcc")
    p(f"v_and_b32 v{t0+4}, 31, v{vLane}")
    p(f"v_min_u32 v{t0+4}, 16, v{t0+4}")
    p(f"v_lshl_add_u32 v{t0+4}, v{t0+4}, 1, v{t0}")
    p(f"v_lshlrev_b32 v{t0+4}, 5, v{t0+4}")
    p(f"v_add_u32 v{t0+13}, {L_KVF}, v{t0+4}")
    p(f"v_mul_u32_u24 v{t0+1}, 1536, v{vLane}")
    p(f"v_add_u32 v{t0+1}, {1024+31*16+12}, v{t0+1}")
    q = Prog()
    spin(q, "kvpoll", f"buffer_load_dword v{vT}, v{t0+1}, {sr(SRD_WS,4)}, s{sT2} offen sc1", 16)
    p.extend(q)
    stamp(p, "a_poll")
    p(f"s_mov_b32 s{sSpin}, 0")
    p("L_gather:")
    p(f"s_mov_b32 s{sT0}, s{sT2}")
    for i in range(8):
        for g in range(3):
            p(f"buffer_load_dwordx4 {vr(vACC+12*i+4*g,4)}, v{t0+9}, {sr(SRD_WS,4)}, s{sT0} offen offset:{g*512} sc1")
        if i < 7:
            p(f"s_add_u32 s{sT0}, s{sT0}, 3072")
    RD = vF[0]
    for i in range(8):
        p(f"s_waitcnt vmcnt({21-3*i})")
        for g in range(3):
            c = "0" if i == 0 else vr(RD + 4 * g, 4)
            p(f"v_mfma_f32_16x16x32_bf16 {vr(RD+4*g,4)}, {vr(SEL,4)}, {vr(vACC+12*i+4*g,4)}, {c}")
    for i in range(24):
        p(f"v_cmpx_eq_u32 vcc, s{sTag}, v{vACC+4*i+3}")
    p(f"s_add_u32 s{sSpin}, s{sSpin}, 1")
    p(f"s_cmp_ge_u32 s{sSpin}, {Cfg.spin_max}")
    p(f"s_cselect_b64 {sr(sMask,2)}, -1, exec")
    p("s_mov_b64 exec, -1")
    p(f"s_cmp_eq_u64 {sr(sMask,2)}, -1")
    p("s_cbranch_scc0 L_gather")
    stamp(p, "a_gath")
    for g in range(3):
        p(f"v_cvt_pk_bf16_f32 v{vACC+2*g}, v{RD+4*g}, v{RD+4*g+1}")
        p(f"v_cvt_pk_bf16_f32 v{vACC+2*g+1}, v{RD+4*g+2}, v{RD+4*g+3}")
    p(f"v_add_f32 v{vACC+6}, v{RD+8}, v{RD+9}")
    p(f"v_cvt_pk_bf16_f32 v{vACC+6}, v{vACC+6}, v{vACC+6}")
    p(f"ds_write_b32 v{t0+10}, v{vACC}")
    p(f"ds_write_b32 v{t0+10}, v{vACC+2} offset:12")
    p(f"ds_write_b32 v{t0+11}, v{vACC+4} offset:24")
    p(f"ds_write_b32 v{t0+11}, v{vACC+1} offset:4")
    p(f"ds_write_b32 v{t0+11}, v{vACC+3} offset:16")
    p(f"ds_write_b32 v{t0+11}, v{vACC+5} offset:28")
    p(f"ds_write_b16 v{t0+12}, v{vACC+6}")
    stamp(p, "a_kvf")
    p("s_waitcnt lgkmcnt(0)")
    p("s_barrier")
    KA = vACC + 64
    for hd in range(4):
        p(f"ds_read_b128 {vr(KA+8*hd,4)}, v{t0+13} offset:{hd*1088}")
        p(f"ds_read_b128 {vr(KA+8*hd+4,4)}, v{t0+13} offset:{hd*1088+16}")
    p(f"v_mul_f32 v{t0}, {hex(f2u(1e-6))}, v{vCG}")
    p(f"s_lshl_b32 s{sT2}, s{sIdx}, 12")
    p(f"s_add_u32 s{sT2}, s{sT2}, s{sA2}")
    p(f"s_add_u32 s{sT2}, s{sT2}, {88*1024}")
    for hd in range(4):
        p(f"s_waitcnt lgkmcnt({6-2*hd})")
        p(f"v_mfma_f32_32x32x16_bf16 {vr(vACC+16*hd,16)}, {vr(KA+8*hd,4)}, {vr(vPQ+8*hd,4)}, 0")
        p(f"v_mfma_f32_32x32x16_bf16 {vr(vACC+16*hd,16)}, {vr(KA+8*hd+4,4)}, {vr(vPQ+8*hd+4,4)}, {vr(vACC+16*hd,16)}")
    p("s_nop 7")
    p("s_nop 3")
    for hd in range(4):
        a = vACC + 16 * hd
        p(f"v_fma_f32 v{a+8}, v{a+8}, v{vCG}, v{t0}")
        p(f"v_rcp_f32 v{a+8}, v{a+8}")
        p("s_nop 0")
        for j in range(4):
            p(f"v_pk_mul_f32 {vr(a+2*j,2)}, {vr(a+2*j,2)}, {vr(a+8,2)} op_sel_hi:[1,0]")
        for j in range(4):
            p(f"v_cvt_pk_bf16_f32 v{a+12+j}, v{a+2*j}, v{a+2*j+1}")
        p.vm(f"buffer_store_dwordx4 {vr(a+12,4)}, v{vL16}, {sr(SRD_WS,4)}, s{sT2} offen offset:{hd*1024} sc1", "O")
    stamp(p, "a_ost")
    p.extend(b2_tr(3, 1))
    p("s_waitcnt lgkmcnt(0)")
    e = Prog(); p.extend(merge(e, b2_dma(5, 1), 1))
    p.extend(b2_tr(4, 0))
    set_flag(p, "O")
    stamp(p, "a_flag")
    p.waitvm("B5"); p.extend(b2_tr(5, 1))
    P += p.resolve(pend0)[0]

    p = Prog()
    p("L_phase2:")
    stamp(p, "p2")
    srd(p, SRD_T, sB2, 1024)
    p(f"v_and_b32 v{vT+2}, 31, v{vLane}")
    p(f"v_lshrrev_b32 v{vT+3}, 5, v{vLane}")
    p(f"v_lshlrev_b32 v{vT+4}, 1, v{vT+2}")
    p(f"v_lshl_add_u32 v{vT+4}, v{vT+3}, 30, v{vT+4}")
    p(f"s_lshl_b32 s{sT0}, s{sCT}, 7")
    p(f"buffer_load_ushort v{vB2v}, v{vT+4}, {sr(SRD_T,4)}, s{sT0} offen offset:64")
    p(f"buffer_load_ushort v{vB2v+1}, v{vT+4}, {sr(SRD_T,4)}, s{sT0} offen")
    p(f"s_lshr_b32 s{sT0}, s{sWave}, 1")
    p(f"s_lshl_b32 s{sT1}, s{sRT}, 1")
    p(f"s_add_u32 s{sT1}, s{sT1}, s{sT0}")
    p(f"s_mul_i32 s{sT2}, s{sT1}, {A2_TB}")
    p(f"v_add_u32 v{vA0}, s{sT2}, v{vL16}")
    p(f"s_xor_b32 s{sT2}, s{sT1}, 1")
    p(f"s_mul_i32 s{sT2}, s{sT2}, {A2_TB}")
    p(f"v_add_u32 v{vA1}, s{sT2}, v{vL16}")
    p(f"s_lshl_b32 s{sT1}, s{sT1}, 15")
    p(f"s_lshl_b32 s{sT2}, s{sCT}, 7")
    p(f"s_add_u32 s{sT1}, s{sT1}, s{sT2}")
    p(f"s_and_b32 s{sT2}, s{sWave}, 1")
    p(f"s_lshl_b32 s{sT2}, s{sT2}, 6")
    p(f"s_add_u32 s{sT1}, s{sT1}, s{sT2}")
    p(f"v_lshlrev_b32 v{vT+5}, 10, v{vT+2}")
    p(f"v_lshl_add_u32 v{vT+5}, v{vT+3}, 4, v{vT+5}")
    p(f"v_add_u32 v{vT+5}, s{sT1}, v{vT+5}")
    p(f"v_and_b32 v{vT+6}, 1, v{vLane}")
    p(f"v_bfe_u32 v{vT+7}, v{vLane}, 1, 1")
    p(f"v_lshl_add_u32 v{vT+6}, v{vT+7}, 2, v{vT+6}")
    p(f"v_lshlrev_b32 v{vT+6}, 7, v{vT+6}")
    p(f"s_lshr_b32 s{sT0}, s{sRT}, 1")
    p(f"s_lshl_b32 s{sT0}, s{sT0}, 4")
    p(f"s_lshl_b32 s{sT1}, s{sWave}, 1")
    p(f"s_add_u32 s{sT0}, s{sT0}, s{sT1}")
    p(f"s_lshl_b32 s{sT0}, s{sT0}, 2")
    p(f"s_and_b32 s{sT1}, s{sRT}, 1")
    p(f"s_lshl_b32 s{sT1}, s{sT1}, 1")
    p(f"s_add_u32 s{sT0}, s{sT0}, s{sT1}")
    p(f"s_lshl_b32 s{sT0}, s{sT0}, 7")
    p(f"s_add_u32 s{sT3}, s{sT0}, {FLG_OFF}")
    p(f"s_add_u32 s{sT2}, s{sT3}, {8*4*128}")
    spin(p, "hpoll", f"buffer_load_dword v{vT}, v{vT+6}, {sr(SRD_WS,4)}, s{sT2} offen sc1", 4)
    stamp(p, "hpoll")
    p("s_waitcnt lgkmcnt(0)")
    p(f"s_cmp_lg_u32 s{sWave}, 3")
    p("s_cbranch_scc1 L_nob2")
    p(f"v_lshl_or_b32 v{vB2v}, v{vB2v}, 16, v{vB2v}")
    p(f"v_lshl_or_b32 v{vB2v+1}, v{vB2v+1}, 16, v{vB2v+1}")
    p(f"v_accvgpr_write_b32 a160, v{vB2v}")
    p(f"v_accvgpr_write_b32 a164, v{vB2v+1}")
    p("L_nob2:")
    AB = 64
    NR = 12
    AHEAD = 6
    def a2load(i):
        q = Prog()
        base = i if i < 22 else i - 22
        if i == 0:
            q(f"s_mul_i32 s{sT0}, s{sWave}, {22*1024}")
        elif i == 22:
            q(f"s_lshl_b32 s{sT0}, s{sWave}, 13")
            q(f"s_add_u32 s{sT0}, s{sT0}, {88*1024}")
        elif base % 4 == 0:
            q(f"s_add_u32 s{sT0}, s{sT0}, 4096")
        r = AB + 8 * (i % NR)
        q.vm(f"buffer_load_dwordx4 {vr(r,4)}, v{vA0}, {sr(SRD_WS,4)}, s{sT0} offen offset:{(base%4)*1024} sc1", f"A{i}")
        q.vm(f"buffer_load_dwordx4 {vr(r+4,4)}, v{vA1}, {sr(SRD_WS,4)}, s{sT0} offen offset:{(base%4)*1024} sc1", f"A{i}")
        return q
    def a2mfma(i, u):
        r = AB + 8 * (i % NR)
        c = "0" if i == 0 else vr(16 * u, 16)
        return f"v_mfma_f32_32x32x16_bf16 {vr(16*u,16)}, {ar(8*i+4*(u&1),4)}, {vr(r+4*(u>>1),4)}, {c}"
    for i in range(AHEAD):
        p.extend(a2load(i))
    nxt = AHEAD
    for i in range(30):
        if nxt == 22 and i == 22 - AHEAD:
            spin(p, "opoll", f"buffer_load_dword v{vT}, v{vT+6}, {sr(SRD_WS,4)}, s{sT3} offen sc1", 4)
            stamp(p, "opoll")
            for k in range(22, 28):
                p.extend(a2load(k))
            nxt = 28
        p.waitvm(f"A{i}")
        ld = []
        if nxt < 30 and nxt - i <= AHEAD and nxt != 22:
            ld = a2load(nxt).items; nxt += 1
        for u in range(4):
            p(a2mfma(i, u))
            if u == 0:
                p.items += ld[:-1]
            if u == 2:
                p.items += ld[-1:]
    stamp(p, "p2mm")
    p(f"s_mul_i32 s{sT0}, s{sWave}, 12288")
    p(f"v_add_u32 v{vT+8}, s{sT0}, v{vL16}")
    for u in (1, 2, 3):
        p(f"s_xor_b32 s{sT1}, s{sWave}, {u}")
        p(f"s_mul_i32 s{sT1}, s{sT1}, 12288")
        p(f"v_add_u32 v{vT+8+u}, s{sT1}, v{vL16}")
    srd(p, SRD_T, sOUT, 2048 * 1024)
    p("s_barrier")
    for u in (1, 2, 3):
        for qd in range(4):
            p(f"ds_write_b128 v{vT+8+u}, {vr(16*u+4*qd,4)} offset:{(u-1)*4096+qd*1024}")
    stamp(p, "p2w")
    p("s_waitcnt lgkmcnt(0)")
    p("s_barrier")
    for u in (1, 2, 3):
        for qd in range(4):
            p(f"ds_read_b128 {vr(16*u+4*qd,4)}, v{vT+8} offset:{(u-1)*4096+qd*1024}")
    for u in (1, 2, 3):
        p(f"s_waitcnt lgkmcnt({12-4*u})")
        for j in range(8):
            p(f"v_pk_add_f32 {vr(2*j,2)}, {vr(2*j,2)}, {vr(16*u+2*j,2)}")
    stamp(p, "p2r")
    for j in range(8):
        p(f"v_cvt_pk_bf16_f32 v{16+j}, v{2*j}, v{2*j+1}")
    p("s_nop 1")
    p("v_permlane32_swap_b32 v16, v18")
    p("v_permlane32_swap_b32 v17, v19")
    p("v_permlane32_swap_b32 v20, v22")
    p("v_permlane32_swap_b32 v21, v23")
    p(f"buffer_store_dwordx4 v[16:19], v{vT+5}, {sr(SRD_T,4)}, 0 offen")
    p(f"buffer_store_dwordx4 v[20:23], v{vT+5}, {sr(SRD_T,4)}, 0 offen offset:32")
    if Cfg.stamps:
        stamp(p, "p2st")
        p("s_waitcnt vmcnt(0)")
        stamp(p, "end")
        p(f"s_memrealtime {sr(sT0+1,2)}")
        p("s_waitcnt lgkmcnt(0)")
        for i in range(24):
            p(f"v_mov_b32 v{i}, s{sSt+i}")
        p(f"v_mov_b32 v24, s{sT0+1}")
        p(f"v_mov_b32 v25, s{sT0+2}")
        p(f"s_getreg_b32 s{sT0}, hwreg(HW_REG_XCC_ID)")
        p(f"v_mov_b32 v26, s{sT0}")
        p(f"v_mov_b32 v27, 0")
        p(f"s_lshl_b32 s{sT0}, s2, 2")
        p(f"s_add_u32 s{sT0}, s{sT0}, s{sWave}")
        p(f"s_lshl_b32 s{sT0}, s{sT0}, 7")
        p(f"s_add_u32 s{sT0}, s{sT0}, {STAMP_OFF}")
        p("s_mov_b64 exec, 1")
        for i in range(7):
            p(f"buffer_store_dwordx4 {vr(4*i,4)}, v27, {sr(SRD_WS,4)}, s{sT0} offen offset:{16*i}")
    p("L_exit:")
    p("s_endpgm")
    p("L_codeend:")
    P += p.resolve([])[0]
    return P


HEADER = """; Fused gated mix: hedgehog linear attention + GELU FFN, one persistent launch, 256 workgroups (one per CU).
; @launch grid=(256,1,1) block=(256,1,1) lds=163840
.amdgcn_target "amdgcn-amd-amdhsa--gfx950"
.text
.globl {k}
.p2align 8
.type {k},@function
{k}:
"""
FOOTER = """.section .rodata,"a"
.p2align 6
.amdhsa_kernel {k}
  .amdhsa_next_free_vgpr 512
  .amdhsa_next_free_sgpr 102
  .amdhsa_accum_offset 256
  .amdhsa_group_segment_fixed_size 0
  .amdhsa_kernarg_size 104
  .amdhsa_user_sgpr_count 2
  .amdhsa_user_sgpr_kernarg_segment_ptr 1
  .amdhsa_system_sgpr_workgroup_id_x 1
.end_amdhsa_kernel
"""

def emit(path):
    body = build()
    txt = HEADER.format(k=KNAME) + "\n".join(("" if l.endswith(":") or l.startswith(".") else "    ") + l for l in body) + "\n" + FOOTER.format(k=KNAME)
    open(path, "w").write(txt)

if __name__ == "__main__":
    out = sys.argv[1]
    for a in sys.argv[2:]:
        k, v = a.split("=")
        setattr(Cfg, k, int(v))
    emit(out)
```

```python
import sys, struct
KNAME = "gated_mix__linear_kernel_hedgehog__dense_activation_gelu__prompt_kernel"

def f2u(x):
    return struct.unpack("<I", struct.pack("<f", x))[0]

class Cfg:
    stamps = False
    spin_max = 1 << 20
    fixdur = 0
    mult = 0

A2_TB = 120 * 1024
KVP_OFF = 0x800000
FLG_OFF = 0x900000
NONCE_OFF = 0x1000000
STAMP_OFF = 0x8000000
SLOT = 40960
L_PHI = 81920
L_V = 114688
L_KVF = 131072
L_TRASH = 135424
L_GATE = 155648
L_ZERO = 156672
L_WPHI = 157696
OOB = 0x40000000

sX, sWQKV, sWPHI, sWO, sBX, sW1, sB1, sW2 = 4, 6, 8, 10, 12, 14, 16, 18
sB2, sGATE, sOUT, sDBG, sWS = 20, 22, 24, 26, 28
SRD_A = 32
SRD_B = 36
SRD_WS = 40
SRD_T = 44
sOffA, sOffB, sIncA, sIncB = 48, 49, 50, 51
sWave, sR, sIdx, sIsF = 52, 53, 54, 55
sRT, sCT = 56, 57
sSlotR, sSlotW = 58, 59
sCnt = 60
sT0, sT1, sT2, sT3 = 61, 62, 63, 64
sTag = 65
sC1, sC2 = 66, 68
sL2E = 70
sMask = 72
sW10K = 74
sStart = 75
sSpin = 76
sA2 = 77
sSt = 78

vACC = 0
vGACC = 96
vF = [100, 132]
vOff = 164
vXb, vWb, vX, vW, vG = 174, 175, 176, 177, 178
vLane, vL16 = 179, 180
vCG = 182
vTag = 184
vT = 186
vWPH = 200
vPQ = 216
vBb0, vBb1 = 248, 249
vA0, vA1 = 250, 251
vB2v = 252
vTid = 254


class Prog:
    def __init__(self):
        self.items = []
    def __call__(self, s):
        for line in s.split("\n"):
            line = line.strip()
            if line:
                self.items.append(("i", line, None))
    def vm(self, s, tag=None):
        self.items.append(("vm", s, tag))
    def waitvm(self, tag):
        self.items.append(("wait", None, tag))
    def extend(self, other):
        self.items += other.items
    def resolve(self, pending):
        out = []
        seq = list(pending)
        for kind, s, tag in self.items:
            if kind == "i":
                out.append(s)
                if s.startswith("s_waitcnt") and "vmcnt(0)" in s:
                    seq = []
            elif kind == "vm":
                out.append(s)
                seq.append(tag)
            else:
                idx = [k for k, t in enumerate(seq) if t == tag]
                if idx:
                    n = len(seq) - 1 - idx[-1]
                    assert n <= 63
                    out.append(f"s_waitcnt vmcnt({n})")
                    seq = seq[idx[-1] + 1:]
        return out, seq


def merge(fg, bg, every, start=0):
    out = Prog()
    b = list(bg.items)
    k = 0
    for n, it in enumerate(fg.items):
        out.items.append(it)
        if n >= start and (n - start) % every == every - 1 and k < len(b):
            out.items.append(b[k]); k += 1
    if k < len(b) and out.items and out.items[-1][1] and "m0" in out.items[-1][1].split(",")[0]:
        out.items.append(("i", "s_nop 0", None))
    while k < len(b):
        out.items.append(b[k])
        if b[k][1] and "m0" in b[k][1].split(",")[0]:
            out.items.append(("i", "s_nop 0", None))
        k += 1
    return out


def vr(a, n):
    return f"v[{a}:{a+n-1}]"
def ar(a, n):
    return f"a[{a}:{a+n-1}]"
def sr(a, n):
    return f"s[{a}:{a+n-1}]"

STAMPSETS = {
  1: {"start":0, "pro":1, "gemm":2, "f_gelu":3, "f_flag":4, "a_kepi":3, "a_kvpub":4, "a_qepi":5, "a_poll":6, "a_gath":7, "p2":8, "hpoll":9, "opoll":10, "end":11},
  2: {"start":0, "gemm":1, "f_b0":2, "f_b1":3, "f_b2":4, "f_b3":5, "f_b4":6, "f_gelu":7, "f_dma4":8, "f_flag":9, "p2":10, "end":11,
      "a_addr":2, "a_vw":3, "a_k0":4, "a_k1":5, "a_k2":6, "a_k3":7, "a_kepi":8, "a_kvpub":9},
  3: {"start":0, "a_kvpub":1, "a_qtr":2, "a_q0":3, "a_q1":4, "a_q2":5, "a_qepi":6, "a_gath":7, "a_kvf":8, "a_ost":9, "a_flag":10, "end":11,
      "opoll":None},
  4: {"start":0, "ka":1, "c0":2, "c1":3, "pro":4, "hpoll":5, "opoll":6, "p2mm":7, "p2w":8, "p2r":9, "p2st":10, "end":11},
}
def stamp(p, name):
    if Cfg.stamps:
        k = STAMPSETS[Cfg.stamps].get(name)
        if k is not None:
            p(f"s_memtime {sr(sSt+2*k, 2)}")


def srd(p, d, base, nrec, bias=0):
    if bias:
        p(f"s_sub_u32 s{d}, s{base}, {bias}")
        p(f"s_subb_u32 s{d+1}, s{base+1}, 0")
    else:
        p(f"s_mov_b32 s{d}, s{base}")
        p(f"s_mov_b32 s{d+1}, s{base+1}")
    p(f"s_mov_b32 s{d+2}, {nrec + bias}")
    p(f"s_mov_b32 s{d+3}, 0x20000")


def csel(p, d, a, b):
    p(f"s_mov_b32 s{d}, {b}")
    p(f"s_cselect_b32 s{d}, {a}, s{d}")


def dma_chunk(tag, m0_expr):
    p = Prog()
    p(m0_expr)
    for t in range(10):
        s, so = (SRD_A, sOffA) if t < 4 else (SRD_B, sOffB)
        if t in (4, 8):
            p("s_add_u32 m0, m0, 4096")
        p.vm(f"buffer_load_dwordx4 v{vOff+t}, {sr(s,4)}, s{so} offen offset:{(t%4)*1024} lds", tag)
    return p


def b2_tr(c, slot):
    p = Prog()
    for k in range(5):
        i = 5 * c + k
        for u in range(2):
            vb = vBb0 if u == 0 else vBb1
            for jh in range(2):
                p(f"ds_read_b64_tr_b16 {ar(8*i+4*u+2*jh,2)}, v{vb} offset:{slot*SLOT + k*2048 + jh*1024}")
    return p


def b2_dma(c, slot):
    p = Prog()
    if c == 4:
        srd(p, SRD_B, sWO, 512 * 1024, bias=32768)
        p(f"s_lshl_b32 s{sOffB}, s{sWave}, 17")
    if c == 5:
        srd(p, SRD_A, sWO, 512 * 1024, bias=32768)
        p(f"s_add_u32 s{sOffB}, s{sOffB}, {48*1024 + 32768}")
        p(f"s_mov_b32 s{sOffA}, s{sOffB}")
    p.extend(dma_chunk(f"B{c}", f"s_add_u32 m0, s{sW10K}, {slot*SLOT}"))
    if c < 4:
        p(f"s_add_u32 s{sOffA}, s{sOffA}, 81920")
        p(f"s_add_u32 s{sOffB}, s{sOffB}, 81920")
    return p


def spin(p, name, load, nlanes):
    p(f"s_mov_b32 s{sSpin}, 0")
    p(f"s_mov_b64 exec, {(1 << nlanes) - 1}")
    p(f"L_{name}:")
    p(load)
    p(f"s_add_u32 s{sSpin}, s{sSpin}, 1")
    p(f"s_waitcnt vmcnt(0)")
    p(f"v_cmp_ne_u32 vcc, s{sTag}, v{vT}")
    p(f"s_cbranch_vccz L_{name}_x")
    p(f"s_cmp_lt_u32 s{sSpin}, {Cfg.spin_max}")
    p(f"s_cbranch_scc1 L_{name}")
    p(f"L_{name}_x:")
    p("s_mov_b64 exec, -1")


def softmax16(p, src, dst, t):
    p(f"v_max3_f32 v{t}, v{src}, v{src+1}, v{src+2}")
    p(f"v_max3_f32 v{t+1}, v{src+3}, v{src+4}, v{src+5}")
    p(f"v_max3_f32 v{t}, v{t}, v{src+6}, v{src+7}")
    p(f"v_max3_f32 v{t+1}, v{t+1}, v{src+8}, v{src+9}")
    p(f"v_max3_f32 v{t}, v{t}, v{src+10}, v{src+11}")
    p(f"v_max3_f32 v{t+1}, v{t+1}, v{src+12}, v{src+13}")
    p(f"v_max3_f32 v{t}, v{t}, v{src+14}, v{src+15}")
    p(f"v_max_f32 v{t}, v{t}, v{t+1}")
    p(f"v_mul_f32 v{t}, {hex(f2u(-1.4426950408889634))}, v{t}")
    for j in range(8):
        p(f"v_pk_fma_f32 {vr(src+2*j,2)}, {vr(src+2*j,2)}, {sr(sL2E,2)}, {vr(t,2)} op_sel_hi:[1,1,0]")
    for j in range(16):
        p(f"v_exp_f32 v{src+j}, v{src+j}")
    p(f"v_pk_add_f32 {vr(t,2)}, {vr(src,2)}, {vr(src+2,2)}")
    p(f"v_pk_add_f32 {vr(t+2,2)}, {vr(src+4,2)}, {vr(src+6,2)}")
    p(f"v_pk_add_f32 {vr(t,2)}, {vr(t,2)}, {vr(src+8,2)}")
    p(f"v_pk_add_f32 {vr(t+2,2)}, {vr(t+2,2)}, {vr(src+10,2)}")
    p(f"v_pk_add_f32 {vr(t,2)}, {vr(t,2)}, {vr(src+12,2)}")
    p(f"v_pk_add_f32 {vr(t+2,2)}, {vr(t+2,2)}, {vr(src+14,2)}")
    p(f"v_pk_add_f32 {vr(t,2)}, {vr(t,2)}, {vr(t+2,2)}")
    p(f"v_add_f32 v{t}, v{t}, v{t+1}")
    p(f"v_rcp_f32 v{t}, v{t}")
    p("s_nop 0")
    for j in range(8):
        p(f"v_pk_mul_f32 {vr(src+2*j,2)}, {vr(src+2*j,2)}, {vr(t,2)} op_sel_hi:[1,0]")
    for j in range(8):
        p(f"v_cvt_pk_bf16_f32 v{dst+j}, v{src+2*j}, v{src+2*j+1}")


def gelu_block(p, a, tmp, dst):
    for j in range(8):
        p(f"v_pk_mul_f32 {vr(tmp+2*j,2)}, {vr(a+2*j,2)}, {vr(a+2*j,2)}")
    for j in range(8):
        p(f"v_pk_fma_f32 {vr(tmp+2*j,2)}, {vr(tmp+2*j,2)}, {sr(sC2,2)}, {vr(vT,2)} op_sel_hi:[1,1,0]")
    for j in range(8):
        p(f"v_pk_mul_f32 {vr(tmp+2*j,2)}, {vr(tmp+2*j,2)}, {vr(a+2*j,2)}")
    for j in range(16):
        p(f"v_exp_f32 v{tmp+j}, v{tmp+j}")
    for j in range(8):
        p(f"v_pk_fma_f32 {vr(tmp+2*j,2)}, {vr(tmp+2*j,2)}, {vr(vCG,2)}, {vr(vCG,2)} op_sel_hi:[1,0,0]")
    for j in range(16):
        p(f"v_rcp_f32 v{tmp+j}, v{tmp+j}")
    for j in range(8):
        p(f"v_pk_mul_f32 {vr(tmp+2*j,2)}, {vr(tmp+2*j,2)}, {vr(a+2*j,2)}")
    for j in range(8):
        p(f"v_cvt_pk_bf16_f32 v{dst+j}, v{tmp+2*j}, v{tmp+2*j+1}")


def set_flag(p, tag):
    p.waitvm(tag)
    p(f"v_mov_b32 v{vT+1}, 0")
    p(f"s_lshl_b32 s{sT0}, s{sR}, 4")
    p(f"s_lshl_b32 s{sT1}, s{sIsF}, 3")
    p(f"s_add_u32 s{sT0}, s{sT0}, s{sT1}")
    p(f"s_add_u32 s{sT0}, s{sT0}, s{sIdx}")
    p(f"s_lshl_b32 s{sT0}, s{sT0}, 2")
    p(f"s_add_u32 s{sT0}, s{sT0}, s{sWave}")
    p(f"s_lshl_b32 s{sT0}, s{sT0}, 7")
    p(f"s_add_u32 s{sT0}, s{sT0}, {FLG_OFF}")
    p("s_mov_b64 exec, 1")
    p.vm(f"buffer_store_dword v{vTag}, v{vT+1}, {sr(SRD_WS,4)}, s{sT0} offen sc1", "flag")
    p("s_mov_b64 exec, -1")


def build():
    P = []
    p = Prog()
    p("s_cmp_ge_u32 s2, 256")
    p("s_cbranch_scc1 L_exit")
    if Cfg.stamps:
        for i in range(2, 24):
            p(f"s_mov_b32 s{sSt+i}, 0")
    if Cfg.fixdur or Cfg.mult:
        p("s_memrealtime s[98:99]")
    stamp(p, "start")
    p(f"s_load_dwordx16 {sr(4,16)}, s[0:1], 0")
    p(f"s_load_dwordx8 {sr(20,8)}, s[0:1], 64")
    p(f"s_load_dwordx2 {sr(28,2)}, s[0:1], 96")
    p(f"v_mov_b32 v{vTid}, v0")
    p(f"v_lshrrev_b32 v1, 6, v0")
    p(f"v_and_b32 v{vLane}, 63, v0")
    p(f"v_readfirstlane_b32 s{sWave}, v1")
    p(f"v_lshlrev_b32 v{vL16}, 4, v{vLane}")
    p(f"s_getpc_b64 {sr(SRD_T,2)}")
    p("L_pc:")
    p(f"s_mov_b32 s{SRD_T+2}, L_codeend-L_pc")
    p(f"s_mov_b32 s{SRD_T+3}, 0x20000")
    p(f"s_lshr_b32 s{sT0}, s2, 3")
    p(f"s_lshl_b32 s{sT1}, s{sT0}, 10")
    p(f"v_lshlrev_b32 v1, 7, v0")
    p(f"v_cmp_gt_u32 vcc, 8, v0")
    p(f"v_mov_b32 v2, {OOB}")
    p(f"s_nop 0")
    p(f"v_cndmask_b32 v1, v2, v1, vcc")
    p.vm(f"buffer_load_dword v{vT+8}, v1, {sr(SRD_T,4)}, s{sT1} offen", "misc")
    p(f"s_and_b32 s{sT1}, s2, 1")
    p(f"s_lshl_b32 s{sT1}, s{sT1}, 3")
    p(f"s_and_b32 s{sR}, s{sT0}, 7")
    p(f"s_add_u32 s{sR}, s{sR}, s{sT1}")
    p(f"s_bfe_u32 s{sIsF}, s2, 0x10006")
    p(f"s_and_b32 s{sIdx}, s2, 6")
    p(f"s_lshr_b32 s{sT1}, s2, 7")
    p(f"s_add_u32 s{sIdx}, s{sIdx}, s{sT1}")
    p(f"s_and_b32 s{sRT}, s2, 7")
    p(f"s_lshl_b32 s{sRT}, s{sRT}, 2")
    p(f"s_and_b32 s{sT1}, s{sT0}, 3")
    p(f"s_add_u32 s{sRT}, s{sRT}, s{sT1}")
    p(f"s_lshr_b32 s{sCT}, s{sT0}, 2")
    p(f"s_mul_i32 s{sW10K}, s{sWave}, 10240")
    p(f"s_lshr_b32 s{sT1}, s{sIdx}, 1")
    p(f"s_mul_i32 s{sStart}, s{sT1}, 11")
    p(f"s_cmp_lt_u32 s{sIdx}, 6")
    p(f"s_cselect_b32 s{sT1}, 6, 5")
    p(f"s_and_b32 s{sT2}, s{sIdx}, 1")
    p(f"s_mul_i32 s{sT1}, s{sT1}, s{sT2}")
    p(f"s_add_u32 s{sStart}, s{sStart}, s{sT1}")
    p(f"s_lshl_b32 s{sT2}, s{sIdx}, 7")
    p(f"s_lshl_b32 s{sT3}, s{sStart}, 6")
    p(f"s_cmp_eq_u32 s{sIsF}, 0")
    csel(p, sT0, 3072, 2752)
    csel(p, sT1, 1024, 128)
    p(f"s_cselect_b32 s{sT2}, s{sT2}, s{sT3}")
    p(f"s_add_u32 s{sT2}, s{sT2}, 4096")
    p(f"s_lshl_b32 s{sIncB}, s{sT0}, 6")
    p(f"s_mov_b32 s{sIncA}, 128")
    p(f"s_mov_b32 s{sOffA}, 0")
    p(f"s_mov_b32 s{sOffB}, 0")
    p(f"s_lshl_b32 s{sT3}, s{sR}, 2")
    p(f"s_add_u32 s{sT3}, s{sT3}, s{sWave}")
    p(f"s_mul_i32 s{sA2}, s{sT3}, {A2_TB}")
    p(f"s_lshl_b32 s{sT3}, s{sT3}, 15")
    p(f"v_lshrrev_b32 v1, 3, v{vLane}")
    p(f"v_lshlrev_b32 v1, 10, v1")
    p(f"v_lshrrev_b32 v2, 4, v{vLane}")
    p(f"v_and_b32 v3, 7, v{vLane}")
    p(f"v_xor_b32 v2, v2, v3")
    p(f"v_lshl_add_u32 v1, v2, 4, v1")
    p(f"v_add_u32 v{vOff}, s{sT3}, v1")
    p(f"v_xor_b32 v1, 64, v{vOff}")
    p(f"v_add_u32 v{vOff+1}, {8192-1024}, v1")
    p(f"v_add_u32 v{vOff+2}, {2*(8192-1024)}, v{vOff}")
    p(f"v_add_u32 v{vOff+3}, {3*(8192-1024)}, v1")
    p(f"v_bfe_u32 v1, v{vLane}, 2, 3")
    p(f"s_lshl_b32 s{sT3}, s{sWave}, 4")
    p(f"v_add_u32 v2, s{sT3}, v1")
    p(f"v_mul_lo_u32 v2, v2, s{sT0}")
    p(f"v_lshrrev_b32 v3, 5, v{vLane}")
    p(f"v_and_b32 v4, 3, v{vLane}")
    p(f"v_lshlrev_b32 v4, 4, v4")
    p(f"v_lshl_add_u32 v4, v3, 6, v4")
    p(f"v_add3_u32 v2, v2, v4, s{sT2}")
    p(f"s_lshl_b32 s{sT0}, s{sT0}, 3")
    p(f"s_sub_u32 s{sT1}, s{sT1}, 1024")
    p(f"v_mov_b32 v{vOff+4}, v2")
    p(f"v_add_u32 v{vOff+5}, s{sT1}, v2")
    p(f"v_add_u32 v{vOff+6}, s{sT1}, v{vOff+5}")
    p(f"v_add_u32 v2, s{sT0}, v2")
    p(f"v_subrev_u32 v{vOff+7}, 3072, v2")
    p(f"v_add_u32 v2, 1024, v2")
    p(f"v_add_u32 v{vOff+8}, s{sT1}, v2")
    p(f"v_add_u32 v{vOff+9}, s{sT1}, v{vOff+8}")
    p(f"s_and_b32 s{sT0}, s{sIdx}, 1")
    p(f"s_cmp_ge_u32 s{sIdx}, 6")
    p(f"s_cselect_b32 s{sT0}, 1, s{sT0}")
    p(f"s_and_b32 s{sT0}, s{sT0}, s{sIsF}")
    p(f"s_lshl_b32 s{sT0}, s{sT0}, 30")
    p(f"v_mul_lo_u32 v5, v3, s{sT0}")
    p(f"v_or_b32 v{vOff+6}, v5, v{vOff+6}")
    p(f"v_or_b32 v{vOff+9}, v5, v{vOff+9}")
    p(f"s_lshl_b32 s{sT0}, s{sCT}, 7")
    p(f"v_lshl_add_u32 v4, v1, 10, v4")
    p(f"v_add_u32 v{vT+2}, s{sT0}, v4")
    p(f"v_and_b32 v6, 31, v{vLane}")
    p(f"v_lshlrev_b32 v6, 1, v6")
    p(f"v_lshl_add_u32 v6, v3, 30, v6")
    p(f"s_lshl_b32 s{sT3}, s{sStart}, 6")
    p("s_waitcnt lgkmcnt(0)")
    stamp(p, "ka")
    srd(p, SRD_A, sX, 2048 * 1024)
    p(f"s_cmp_eq_u32 s{sIsF}, 0")
    p(f"s_cselect_b32 s{SRD_B}, s{sWQKV}, s{sW1}")
    p(f"s_cselect_b32 s{SRD_B+1}, s{sWQKV+1}, s{sW1+1}")
    csel(p, SRD_B+2, 512*3072+4096, 512*2752+4096)
    p(f"s_cselect_b32 s{SRD_T+2}, 0, 2752")
    p(f"s_mov_b32 s{SRD_B+3}, 0x20000")
    p(f"s_sub_u32 s{SRD_B}, s{SRD_B}, 4096")
    p(f"s_subb_u32 s{SRD_B+1}, s{SRD_B+1}, 0")
    d = dma_chunk("c0", f"s_add_u32 m0, s{sW10K}, {1*SLOT}")
    e = Prog(); p.extend(merge(e, d, 1))
    p(f"s_add_u32 s{sOffA}, s{sOffA}, s{sIncA}")
    p(f"s_add_u32 s{sOffB}, s{sOffB}, s{sIncB}")
    stamp(p, "c0")
    p(f"s_mov_b32 s{SRD_T}, s{sB1}")
    p(f"s_mov_b32 s{SRD_T+1}, s{sB1+1}")
    for b in range(6):
        p.vm(f"buffer_load_ushort v{vF[1]+8+4*b}, v6, {sr(SRD_T,4)}, s{sT3} offen offset:{64*b}", "misc")
    p(f"s_cmp_lt_u32 s{sWave}, 2")
    p(f"s_cselect_b32 s{SRD_T}, s{sGATE}, s{sWPHI}")
    p(f"s_cselect_b32 s{SRD_T+1}, s{sGATE+1}, s{sWPHI+1}")
    csel(p, SRD_T+2, 1024, 16384)
    p(f"s_lshl_b32 s{sT0}, s{sIdx}, 11")
    p(f"s_cmp_lt_u32 s{sWave}, 2")
    p(f"s_cselect_b32 s{sT0}, 0, s{sT0}")
    p(f"s_and_b32 s{sT1}, s{sWave}, 1")
    p(f"s_lshl_b32 s{sT1}, s{sT1}, 10")
    p(f"s_add_u32 s{sT0}, s{sT0}, s{sT1}")
    p(f"s_lshl_b32 s{sT1}, s{sWave}, 10")
    p(f"s_add_u32 m0, s{sT1}, {L_GATE}")
    srd(p, SRD_WS, sWS, 0x10000000)
    p.vm(f"buffer_load_dwordx4 v{vL16}, {sr(SRD_T,4)}, s{sT0} offen lds", "misc")
    p(f"s_or_b32 s{sT0}, s2, s{sWave}")
    p(f"s_cmp_lg_u32 s{sT0}, 0")
    p("s_cbranch_scc1 L_nononce")
    p(f"v_mov_b32 v1, 0")
    p(f"s_mov_b32 s{sT0}, {NONCE_OFF}")
    p("s_mov_b64 exec, 1")
    p(f"buffer_load_dword v2, v1, {sr(SRD_WS,4)}, s{sT0} offen sc1")
    p("s_waitcnt vmcnt(0)")
    p("v_add_u32 v2, 1, v2")
    p(f"v_and_b32 v4, {hex(0xffffffff ^ 0x40004000)}, v2")
    p(f"v_or_b32 v4, 0x2000, v4")
    p(f"global_store_dword v1, v4, {sr(sDBG,2)} sc1")
    p(f"buffer_store_dword v2, v1, {sr(SRD_WS,4)}, s{sT0} offen sc1")
    p("s_mov_b64 exec, -1")
    p("L_nononce:")
    d = dma_chunk("c1", f"s_add_u32 m0, s{sW10K}, {2*SLOT}")
    e = Prog(); p.extend(merge(e, d, 1))
    p(f"s_add_u32 s{sOffA}, s{sOffA}, s{sIncA}")
    p(f"s_add_u32 s{sOffB}, s{sOffB}, s{sIncB}")
    stamp(p, "c1")
    p(f"v_and_b32 v1, 31, v{vLane}")
    p(f"v_bfe_u32 v2, v{vLane}, 1, 3")
    p(f"v_xor_b32 v2, v2, v3")
    p(f"v_lshlrev_b32 v2, 4, v2")
    p(f"v_lshl_add_u32 v2, v1, 7, v2")
    p(f"v_add_u32 v{vXb}, s{sW10K}, v2")
    p(f"v_bfe_u32 v1, v{vLane}, 2, 2")
    p(f"v_bfe_u32 v2, v{vLane}, 4, 1")
    p(f"v_and_b32 v4, 3, v{vLane}")
    p(f"v_lshlrev_b32 v4, 3, v4")
    p(f"v_lshl_add_u32 v4, v2, 5, v4")
    p(f"v_lshl_add_u32 v4, v1, 6, v4")
    p(f"v_mul_u32_u24 v5, 3072, v3")
    p(f"v_add_u32 v{vWb}, v5, v4")
    p(f"v_lshl_add_u32 v4, v3, 8, v4")
    p(f"s_and_b32 s{sT0}, s{sWave}, 1")
    p(f"s_lshl_b32 s{sT0}, s{sT0}, 9")
    p(f"s_add_u32 s{sT0}, s{sT0}, s{sW10K}")
    p(f"v_add_u32 v{vBb0}, s{sT0}, v4")
    p(f"v_xor_b32 v{vBb1}, 512, v{vBb0}")
    p(f"v_bfe_u32 v1, v{vLane}, 2, 1")
    p(f"v_xor_b32 v1, v1, v2")
    p(f"v_lshlrev_b32 v1, 10, v1")
    p(f"v_lshl_add_u32 v1, v3, 4, v1")
    p(f"v_add_u32 v{vG}, {L_GATE}, v1")
    c1 = -2.0 * 0.7978845608028654 * 1.4426950408889634
    c2 = c1 * 0.044715
    p(f"s_mov_b32 s{sC1}, {hex(f2u(c1))}")
    p(f"s_mov_b32 s{sC2}, {hex(f2u(c2))}")
    p(f"s_mov_b32 s{sC2+1}, {hex(f2u(c2))}")
    p(f"s_mov_b32 s{sL2E}, {hex(f2u(1.4426950408889634))}")
    p(f"s_mov_b32 s{sL2E+1}, {hex(f2u(1.4426950408889634))}")
    for r in range(100):
        p(f"v_mov_b32 v{r}, 0")
    p(f"v_mov_b32 v{vF[1]}, 0x3f80")
    for r in range(1, 8):
        p(f"v_mov_b32 v{vF[1]+r}, 0")
    for b in range(6):
        for r in range(1, 4):
            p(f"v_mov_b32 v{vF[1]+8+4*b+r}, 0")
    p(f"v_mov_b32 v{vT+1}, 0")
    p(f"s_mov_b32 s{sSlotR}, {1*SLOT}")
    p(f"s_mov_b32 s{sSlotW}, 0")
    p(f"s_mov_b32 s{sCnt}, 0")
    stamp(p, "pro")
    P += p.resolve([])[0]

    def mfmas(fs):
        L = [f"v_mfma_f32_32x32x16_bf16 {vr(vACC+16*b,16)}, {vr(vF[fs]+8+4*b,4)}, {vr(vF[fs],4)}, {vr(vACC+16*b,16)}" for b in range(6)]
        L.append(f"v_mfma_f32_16x16x32_bf16 {vr(vGACC,4)}, {vr(vF[fs]+4,4)}, {vr(vF[fs],4)}, {vr(vGACC,4)}")
        return L
    def reads(fs, s):
        L = [f"ds_read_b128 {vr(vF[fs],4)}, v{vX}"]
        for b in range(6):
            o = s * 10240 + 4096 + (b >> 1) * 1024 + (b & 1) * 512
            L.append(f"ds_read_b64_tr_b16 {vr(vF[fs]+8+4*b,2)}, v{vW} offset:{o}")
            L.append(f"ds_read_b64_tr_b16 {vr(vF[fs]+8+4*b+2,2)}, v{vW} offset:{o+256}")
        L.append(f"ds_read_b128 {vr(vF[fs]+4,4)}, v{vG} offset:{s*32}")
        return L
    p = Prog()
    p(".p2align 3")
    p("L_loop:")
    p(f"s_cmp_lg_u32 s{sCnt}, 6")
    p("s_cbranch_scc1 L_noswap")
    srd(p, SRD_A, sW2, 1376 * 1024)
    srd(p, SRD_B, sW2, 1376 * 1024)
    p(f"s_mul_i32 s{sOffA}, s{sWave}, {22*16*1024}")
    p(f"s_mov_b32 s{sOffB}, s{sOffA}")
    p(f"s_mov_b32 s{sIncA}, 81920")
    p(f"s_mov_b32 s{sIncB}, 81920")
    for t in range(10):
        p(f"v_add_u32 v{vOff+t}, {t*8192-(t%4)*1024}, v{vT+2}")
    p(f"global_load_dword v{vTag}, v{vT+1}, {sr(sDBG,2)} sc1")
    p(f"s_waitcnt vmcnt(11)")
    p("s_branch L_swapped")
    p("L_noswap:")
    p("s_waitcnt vmcnt(10)")
    p("L_swapped:")
    p(f"v_add_u32 v{vX}, s{sSlotR}, v{vXb}")
    p(f"v_add_u32 v{vW}, s{sSlotR}, v{vWb}")
    p("s_waitcnt lgkmcnt(0)")
    p("s_barrier")
    dm = [it[1] for it in dma_chunk("x", f"s_add_u32 m0, s{sW10K}, s{sSlotW}").items]
    dgaps = {0: [dm[0:1], dm[1:2], dm[2:3]], 1: [dm[3:4], dm[4:6], dm[6:7]], 2: [dm[7:8], dm[8:9], dm[9:11]], 3: [dm[11:12], dm[12:13], []]}
    for s in range(4):
        cur = (s + 1) & 1
        M = mfmas(cur); R = reads(s & 1, s)
        rg = [R[0:3], R[3:6], R[6:9], R[9:12], R[12:14], [], []]
        if s > 0:
            p("s_waitcnt lgkmcnt(0)")
        for g in range(7):
            p(M[g])
            for x in rg[g]:
                p(x)
            if g == 1 and s < 3:
                p(f"v_xor_b32 v{vX}, {(32, 96, 32)[s]}, v{vX}")
            if g >= 4:
                for x in dgaps[s][g - 4]:
                    p(x)
            if s == 3 and g == 5:
                p(f"v_add_u32 v{vG}, 128, v{vG}")
                p(f"s_add_u32 s{sOffA}, s{sOffA}, s{sIncA}")
                p(f"s_add_u32 s{sOffB}, s{sOffB}, s{sIncB}")
            if s == 3 and g == 6:
                p(f"s_mov_b32 s{sSlotW}, s{sSlotR}")
                p(f"s_add_u32 s{sSlotR}, s{sSlotR}, {SLOT}")
                p(f"s_cmp_eq_u32 s{sSlotR}, {3*SLOT}")
                p(f"s_cselect_b32 s{sSlotR}, 0, s{sSlotR}")
                p(f"s_add_u32 s{sCnt}, s{sCnt}, 1")
                p(f"s_cmp_lt_u32 s{sCnt}, 8")
    p("s_cbranch_scc1 L_loop")
    p("s_waitcnt lgkmcnt(0)")
    p("s_barrier")
    M = mfmas(1)
    p(M[6])
    for g in (2, 3, 0, 1, 4, 5):
        p(M[g])
    stamp(p, "gemm")
    p(f"v_readfirstlane_b32 s{sTag}, v{vTag}")
    p(f"s_mov_b32 s{sSpin}, 0")
    p("L_tagspin:")
    p(f"s_cmp_lg_u32 s{sTag}, 0")
    p("s_cbranch_scc1 L_tagok")
    p(f"global_load_dword v{vTag}, v{vT+1}, {sr(sDBG,2)} sc1")
    p(f"s_add_u32 s{sSpin}, s{sSpin}, 1")
    p("s_waitcnt vmcnt(0)")
    p(f"v_readfirstlane_b32 s{sTag}, v{vTag}")
    p(f"s_cmp_lt_u32 s{sSpin}, {Cfg.spin_max}")
    p("s_cbranch_scc1 L_tagspin")
    p("L_tagok:")
    p(f"s_cmp_eq_u32 s{sIsF}, 0")
    p(f"s_cselect_b32 s{sT0}, {hex(f2u(-1.4426950408889634))}, s{sL2E}")
    p(f"v_mul_f32 v{vCG}, s{sT0}, v{vGACC}")
    p(f"v_exp_f32 v{vCG}, v{vCG}")
    p(f"s_cmp_eq_u32 s{sIsF}, 0")
    p(f"v_add_f32 v{vCG}, 1.0, v{vCG}")
    p(f"v_min_f32 v{vCG}, {hex(f2u(1e30))}, v{vCG}")
    p("s_cbranch_scc1 L_att")
    P += p.resolve([])[0]
    pend0 = ["B0"] * 10 + ["B1"] * 10

    p = Prog()
    p(f"v_mov_b32 v{vT}, s{sC1}")
    p(f"s_lshl_b32 s{sT2}, s{sStart}, 11")
    p(f"s_add_u32 s{sT2}, s{sT2}, s{sA2}")
    p("s_nop 7")
    tmp = vF[0]; dsts = [vF[1], vF[1] + 8]
    bgs = {}
    bg = Prog(); bg.waitvm("B0"); bg.extend(b2_tr(0, 0)); bgs[0] = bg
    bg = Prog(); bg("s_waitcnt lgkmcnt(0)"); bg.extend(b2_dma(2, 0)); bgs[1] = bg
    bg = Prog(); bg.waitvm("B1"); bg.extend(b2_tr(1, 1)); bgs[2] = bg
    bg = Prog(); bg("s_waitcnt lgkmcnt(0)"); bg.extend(b2_dma(3, 1)); bgs[3] = bg
    bg = Prog(); bg.waitvm("B2"); bg.extend(b2_tr(2, 0)); bgs[4] = bg
    for b in range(5):
        f = Prog()
        gelu_block(f, vACC + 16 * b, tmp, dsts[b & 1])
        f = merge(f, bgs[b], 3)
        p.extend(f)
        for u in range(2):
            p.vm(f"buffer_store_dwordx4 {vr(dsts[b&1]+4*u,4)}, v{vL16}, {sr(SRD_WS,4)}, s{sT2} offen offset:{u*1024} sc1", "H")
        p(f"s_add_u32 s{sT2}, s{sT2}, 2048")
        stamp(p, f"f_b{b}")
    d5 = dsts[1]
    p(f"s_cmp_eq_u32 s{sIdx}, 7")
    p("s_cbranch_scc1 L_biasblk")
    p(f"s_and_b32 s{sT0}, s{sIdx}, 1")
    p(f"s_cmp_ge_u32 s{sIdx}, 6")
    p(f"s_cselect_b32 s{sT0}, 1, s{sT0}")
    p(f"s_cmp_eq_u32 s{sT0}, 0")
    p(f"s_cselect_b32 s{sT2}, s{sT2}, {OOB}")
    p("s_cbranch_scc0 L_blk5st")
    gelu_block(p, vACC + 80, tmp, d5)
    p("s_branch L_blk5st")
    p("L_biasblk:")
    p(f"v_rcp_f32 v{tmp}, v{vCG}")
    for r in range(1, 8):
        p(f"v_mov_b32 v{d5+r}, 0")
    p(f"v_cvt_pk_bf16_f32 v{tmp+1}, v{tmp}, v{tmp}")
    p(f"v_lshlrev_b32 v{tmp+1}, 16, v{tmp+1}")
    p(f"v_sub_f32 v{tmp+1}, v{tmp}, v{tmp+1}")
    p(f"v_cvt_pk_bf16_f32 v{d5}, v{tmp}, v{tmp+1}")
    p(f"v_cmp_gt_u32 vcc, 32, v{vLane}")
    p("s_nop 1")
    p(f"v_cndmask_b32 v{d5}, 0, v{d5}, vcc")
    p("L_blk5st:")
    for u in range(2):
        p.vm(f"buffer_store_dwordx4 {vr(d5+4*u,4)}, v{vL16}, {sr(SRD_WS,4)}, s{sT2} offen offset:{u*1024} sc1", "H")
    stamp(p, "f_gelu")
    p("s_waitcnt lgkmcnt(0)")
    e = Prog(); p.extend(merge(e, b2_dma(4, 0), 1))
    stamp(p, "f_dma4")
    set_flag(p, "H")
    stamp(p, "f_flag")
    p.waitvm("B3"); p.extend(b2_tr(3, 1))
    p("s_waitcnt lgkmcnt(0)")
    e = Prog(); p.extend(merge(e, b2_dma(5, 1), 1))
    p.waitvm("B4"); p.extend(b2_tr(4, 0))
    p.waitvm("B5"); p.extend(b2_tr(5, 1))
    p("s_branch L_phase2")
    P += p.resolve(pend0)[0]

    p = Prog()
    p("L_att:")
    t0 = vT
    p(f"v_lshrrev_b32 v{t0}, 5, v{vLane}")
    p(f"v_bfe_u32 v{t0+1}, v{vLane}, 2, 2")
    p(f"v_lshl_add_u32 v{t0+2}, v{t0}, 2, v{t0+1}")
    p(f"v_bfe_u32 v{t0+3}, v{vLane}, 4, 1")
    p(f"v_bfe_u32 v{t0+4}, v{vLane}, 1, 1")
    p(f"v_lshl_add_u32 v{t0+5}, v{t0+3}, 1, v{t0+4}")
    p(f"v_lshlrev_b32 v{t0+6}, 3, v{t0+5}")
    p(f"v_lshl_add_u32 v{t0+6}, v{t0+2}, 5, v{t0+6}")
    p(f"v_add_u32 v{t0+6}, {L_WPHI}, v{t0+6}")
    for hd in range(4):
        p(f"ds_read_b64_tr_b16 {vr(vWPH+4*hd,2)}, v{t0+6} offset:{hd*512}")
        p(f"ds_read_b64_tr_b16 {vr(vWPH+4*hd+2,2)}, v{t0+6} offset:{hd*512+256}")
    p(f"v_lshrrev_b32 v{t0+7}, 1, v{t0+2}")
    p(f"v_and_b32 v{t0+8}, 1, v{vLane}")
    p(f"v_lshl_add_u32 v{t0+9}, v{t0+8}, 1, v{t0+3}")
    p(f"v_xor_b32 v{t0+9}, v{t0+9}, v{t0+7}")
    p(f"v_lshlrev_b32 v{t0+9}, 4, v{t0+9}")
    p(f"v_lshl_add_u32 v{t0+9}, v{t0+4}, 3, v{t0+9}")
    p(f"v_lshl_add_u32 v{t0+9}, v{t0+2}, 6, v{t0+9}")
    p(f"s_lshl_b32 s{sT0}, s{sWave}, 13")
    p(f"s_add_u32 s{sT0}, s{sT0}, {L_PHI}")
    p(f"v_add_u32 v{t0+9}, s{sT0}, v{t0+9}")
    p(f"s_and_b32 s{sT0}, s{sWave}, 1")
    p(f"s_lshl_b32 s{sT0}, s{sT0}, 1")
    p(f"v_add_u32 v{t0+10}, s{sT0}, v{t0+8}")
    p(f"v_xor_b32 v{t0+10}, v{t0+10}, v{t0+7}")
    p(f"v_lshlrev_b32 v{t0+10}, 4, v{t0+10}")
    p(f"v_lshl_add_u32 v{t0+10}, v{t0+4}, 3, v{t0+10}")
    p(f"v_lshl_add_u32 v{t0+10}, v{t0+2}, 6, v{t0+10}")
    p(f"s_lshr_b32 s{sT0}, s{sWave}, 1")
    p(f"s_lshl_b32 s{sT0}, s{sT0}, 13")
    p(f"s_add_u32 s{sT0}, s{sT0}, {L_V}")
    p(f"v_add_u32 v{t0+10}, s{sT0}, v{t0+10}")
    p(f"v_and_b32 v{t0+11}, 31, v{vLane}")
    p(f"v_lshlrev_b32 v{t0+11}, 6, v{t0+11}")
    p(f"s_lshl_b32 s{sT0}, s{sWave}, 11")
    p(f"s_add_u32 s{sT0}, s{sT0}, {L_PHI}")
    p(f"v_add_u32 v{t0+11}, s{sT0}, v{t0+11}")
    p(f"v_bfe_u32 v{t0+1}, v{vLane}, 1, 2")
    p(f"v_lshlrev_b32 v{t0+2}, 1, v{t0}")
    p(f"v_xor_b32 v{t0+2}, v{t0+2}, v{t0+1}")
    p(f"v_lshl_add_u32 v{t0+12}, v{t0+2}, 4, v{t0+11}")
    p(f"v_xor_b32 v{t0+2}, v{t0}, v{t0+1}")
    p(f"v_lshl_add_u32 v{t0+13}, v{t0+2}, 4, v{t0+11}")
    p(f"v_xor_b32 v{t0+11}, 16, v{t0+12}")
    p(f"v_xor_b32 v{t0+8}, 32, v{t0+13}")
    p(f"v_bfe_u32 v{t0+7}, v{vLane}, 2, 1")
    p(f"v_mul_u32_u24 v{t0+7}, 0x8000, v{t0+7}")
    p(f"v_lshl_or_b32 v{t0+7}, v{t0+7}, 16, v{t0+7}")
    p("s_waitcnt lgkmcnt(0)")
    for r in range(16):
        p(f"v_xor_b32 v{vWPH+r}, v{t0+7}, v{vWPH+r}")
    stamp(p, "a_addr")
    PK = vF[0]
    def feature_mfmas(p, blk0):
        for hd in range(4):
            a = vACC + 16 * (blk0 + (hd >> 1)) + 8 * (hd & 1)
            for j in range(4):
                p(f"v_cvt_pk_bf16_f32 v{a+j}, v{a+2*j}, v{a+2*j+1}")
        p("s_nop 1")
        for hd in range(4):
            a = vACC + 16 * (blk0 + (hd >> 1)) + 8 * (hd & 1)
            p(f"v_mfma_f32_32x32x16_bf16 {vr(PK+16*hd,16)}, {vr(vWPH+4*hd,4)}, {vr(a,4)}, 0")
    feature_mfmas(p, 2)
    for hd in range(4):
        a = vACC + 16 * (4 + (hd >> 1)) + 8 * (hd & 1)
        for j in range(4):
            p(f"v_cvt_pk_bf16_f32 v{a+j}, v{a+2*j}, v{a+2*j+1}")
        p(f"ds_write_b128 v{(t0+13) if (hd&1)==0 else (t0+8)}, {vr(a,4)} offset:{L_V-L_PHI + (hd>>1)*8192}")
    stamp(p, "a_vw")
    bgs = {}
    bg = Prog(); bgs[0] = bg
    bg = Prog(); bg.waitvm("B0"); bg.extend(b2_tr(0, 0)); bgs[1] = bg
    bg = Prog(); bg("s_waitcnt lgkmcnt(0)"); bg.extend(b2_dma(2, 0)); bgs[2] = bg
    bg = Prog(); bgs[3] = bg
    for hd in range(4):
        f = Prog()
        dst = vACC + 32 + 8 * hd
        softmax16(f, PK + 16 * hd, dst, t0)
        f(f"ds_write_b128 v{t0+12}, {vr(dst,4)} offset:{hd*8192}")
        f(f"ds_write_b128 v{t0+11}, {vr(dst+4,4)} offset:{hd*8192}")
        p.extend(merge(f, bgs[hd], 3))
        stamp(p, f"a_k{hd}")
    ZA = vACC + 64
    p(f"v_bfe_u32 v{t0}, v{vLane}, 4, 1")
    p(f"v_bfe_u32 v{t0+1}, v{vLane}, 3, 1")
    p(f"v_cmp_eq_u32 vcc, v{t0}, v{t0+1}")
    p(f"v_mov_b32 v{t0}, 0x3f803f80")
    p("s_waitcnt lgkmcnt(0)")
    for r in range(4):
        p(f"v_cndmask_b32 v{ZA+r}, 0, v{t0}, vcc")
    p("s_barrier")
    stamp(p, "a_kepi")
    KVD = vACC + 32; ZD = vACC + 48
    FR = PK
    for half in range(2):
        for ks in range(4 * half, 4 * half + 4):
            if ks % 4 == 3:
                p("s_waitcnt lgkmcnt(8)")
            for jh in range(2):
                p(f"ds_read_b64_tr_b16 {vr(FR+8*ks+2*jh,2)}, v{t0+9} offset:{ks*1024+jh*512}")
                p(f"ds_read_b64_tr_b16 {vr(FR+8*ks+4+2*jh,2)}, v{t0+10} offset:{ks*1024+jh*512}")
        p("s_waitcnt lgkmcnt(0)")
        for ks in range(4 * half, 4 * half + 4):
            c = "0" if ks == 0 else vr(KVD, 16)
            p(f"v_mfma_f32_32x32x16_bf16 {vr(KVD,16)}, {vr(FR+8*ks,4)}, {vr(FR+8*ks+4,4)}, {c}")
            c = "0" if ks == 0 else vr(ZD, 4)
            p(f"v_mfma_f32_16x16x32_bf16 {vr(ZD,4)}, {vr(ZA,4)}, {vr(FR+8*ks,4)}, {c}")
    p(f"v_and_b32 v{t0}, 15, v{vLane}")
    p(f"v_lshrrev_b32 v{t0+1}, 5, v{vLane}")
    p(f"v_lshl_add_u32 v{t0}, v{t0+1}, 4, v{t0}")
    p(f"v_lshlrev_b32 v{t0}, 4, v{t0}")
    p(f"v_bfe_u32 v{t0+1}, v{vLane}, 4, 1")
    p(f"v_lshl_or_b32 v{t0+2}, v{t0+1}, 30, v{t0}")
    p(f"v_mul_u32_u24 v{t0+1}, 1536, v{t0+1}")
    p(f"v_add_u32 v{t0+9}, v{t0+1}, v{t0}")
    p(f"s_lshl_b32 s{sT2}, s{sIdx}, 2")
    p(f"s_add_u32 s{sT2}, s{sT2}, s{sWave}")
    p(f"s_mul_i32 s{sT2}, s{sT2}, {16*1536}")
    p(f"s_add_u32 s{sT2}, s{sT2}, {KVP_OFF}")
    p(f"s_mul_i32 s{sT0}, s{sR}, 1536")
    p(f"s_add_u32 s{sT0}, s{sT0}, s{sT2}")
    GR = vACC + 52
    for j in range(8):
        p(f"v_cvt_pk_bf16_f32 v{GR + (j//3)*4 + j%3}, v{KVD+2*j}, v{KVD+2*j+1}")
    p(f"v_cvt_pk_bf16_f32 v{t0+3}, v{ZD}, v{ZD}")
    p(f"v_lshlrev_b32 v{t0+3}, 16, v{t0+3}")
    p(f"v_sub_f32 v{t0+3}, v{ZD}, v{t0+3}")
    p(f"v_cvt_pk_bf16_f32 v{GR+10}, v{ZD}, v{t0+3}")
    for g in range(3):
        p(f"v_mov_b32 v{GR+4*g+3}, s{sTag}")
    for g in range(3):
        p.vm(f"buffer_store_dwordx4 {vr(GR+4*g,4)}, v{t0+2}, {sr(SRD_WS,4)}, s{sT0} offen offset:{g*512} sc1", "kvp")
    stamp(p, "a_kvpub")
    feature_mfmas(p, 0)
    p.waitvm("B1"); p.extend(b2_tr(1, 1))
    stamp(p, "a_qtr")
    bgs = {}
    bg = Prog(); bg("s_waitcnt lgkmcnt(0)"); bg.extend(b2_dma(3, 1)); bgs[0] = bg
    bg = Prog(); bg.waitvm("B2"); bg.extend(b2_tr(2, 0)); bgs[1] = bg
    bg = Prog(); bg("s_waitcnt lgkmcnt(0)"); bg.extend(b2_dma(4, 0)); bgs[2] = bg
    bg = Prog(); bgs[3] = bg
    for hd in range(4):
        f = Prog()
        softmax16(f, PK + 16 * hd, vPQ + 8 * hd, t0)
        p.extend(merge(f, bgs[hd], 3))
        stamp(p, f"a_q{hd}")
    stamp(p, "a_qepi")
    SEL = vACC + 96 - 96 + 0
    SEL = vF[1] + 28
    p(f"v_lshrrev_b32 v{t0}, 5, v{vLane}")
    p(f"v_bfe_u32 v{t0+1}, v{vLane}, 3, 1")
    p(f"v_cmp_eq_u32 vcc, v{t0}, v{t0+1}")
    p(f"v_and_b32 v{t0+2}, 1, v{vLane}")
    p(f"v_lshlrev_b32 v{t0+2}, 4, v{t0+2}")
    p(f"v_mov_b32 v{t0+3}, 0x3f80")
    p(f"v_lshlrev_b32 v{t0+2}, v{t0+2}, v{t0+3}")
    p(f"v_cndmask_b32 v{t0+2}, 0, v{t0+2}, vcc")
    p(f"v_bfe_u32 v{t0+3}, v{vLane}, 1, 2")
    for r in range(4):
        p(f"v_cmp_eq_u32 vcc, {r}, v{t0+3}")
        p("s_nop 1")
        p(f"v_cndmask_b32 v{SEL+r}, 0, v{t0+2}, vcc")
    p(f"s_mul_i32 s{sT0}, s{sWave}, 1088")
    p(f"s_add_u32 s{sT0}, s{sT0}, {L_KVF}")
    p(f"v_and_b32 v{t0+4}, 15, v{vLane}")
    p(f"v_lshl_add_u32 v{t0+5}, v{t0+4}, 1, v{t0}")
    p(f"v_lshlrev_b32 v{t0+5}, 5, v{t0+5}")
    p(f"v_add_u32 v{t0+5}, s{sT0}, v{t0+5}")
    p(f"v_bfe_u32 v{t0+6}, v{vLane}, 4, 1")
    p(f"v_lshl_add_u32 v{t0+10}, v{t0+6}, 3, v{t0+5}")
    p(f"v_cmp_eq_u32 vcc, 0, v{t0+6}")
    p(f"v_mov_b32 v{t0+7}, {L_TRASH}")
    p(f"v_bfe_u32 v{t0+1}, v{vLane}, 2, 1")
    p(f"v_cndmask_b32 v{t0+11}, v{t0+7}, v{t0+5}, vcc")
    p(f"v_bfe_u32 v{t0+2}, v{vLane}, 3, 1")
    p(f"v_lshl_add_u32 v{t0+2}, v{t0}, 1, v{t0+2}")
    p(f"v_and_b32 v{t0+3}, 3, v{vLane}")
    p(f"v_lshl_add_u32 v{t0+2}, v{t0+2}, 2, v{t0+3}")
    p(f"v_lshlrev_b32 v{t0+2}, 1, v{t0+2}")
    p(f"v_lshl_add_u32 v{t0+2}, v{t0+1}, 5, v{t0+2}")
    p(f"s_add_u32 s{sT0}, s{sT0}, 1024")
    p(f"v_add_u32 v{t0+2}, s{sT0}, v{t0+2}")
    p(f"v_cndmask_b32 v{t0+12}, v{t0+2}, v{t0+7}, vcc")
    p(f"v_and_b32 v{t0+4}, 31, v{vLane}")
    p(f"v_min_u32 v{t0+4}, 16, v{t0+4}")
    p(f"v_lshl_add_u32 v{t0+4}, v{t0+4}, 1, v{t0}")
    p(f"v_lshlrev_b32 v{t0+4}, 5, v{t0+4}")
    p(f"v_add_u32 v{t0+13}, {L_KVF}, v{t0+4}")
    p(f"v_mul_u32_u24 v{t0+1}, 1536, v{vLane}")
    p(f"v_add_u32 v{t0+1}, {1024+31*16+12}, v{t0+1}")
    q = Prog()
    spin(q, "kvpoll", f"buffer_load_dword v{vT}, v{t0+1}, {sr(SRD_WS,4)}, s{sT2} offen sc1", 16)
    p.extend(q)
    stamp(p, "a_poll")
    p(f"s_mov_b32 s{sSpin}, 0")
    p("L_gather:")
    p(f"s_mov_b32 s{sT0}, s{sT2}")
    for i in range(8):
        for g in range(3):
            p(f"buffer_load_dwordx4 {vr(vACC+12*i+4*g,4)}, v{t0+9}, {sr(SRD_WS,4)}, s{sT0} offen offset:{g*512} sc1")
        if i < 7:
            p(f"s_add_u32 s{sT0}, s{sT0}, 3072")
    RD = vF[0]
    for i in range(8):
        p(f"s_waitcnt vmcnt({21-3*i})")
        for g in range(3):
            c = "0" if i == 0 else vr(RD + 4 * g, 4)
            p(f"v_mfma_f32_16x16x32_bf16 {vr(RD+4*g,4)}, {vr(SEL,4)}, {vr(vACC+12*i+4*g,4)}, {c}")
    for i in range(24):
        p(f"v_cmpx_eq_u32 vcc, s{sTag}, v{vACC+4*i+3}")
    p(f"s_add_u32 s{sSpin}, s{sSpin}, 1")
    p(f"s_cmp_ge_u32 s{sSpin}, {Cfg.spin_max}")
    p(f"s_cselect_b64 {sr(sMask,2)}, -1, exec")
    p("s_mov_b64 exec, -1")
    p(f"s_cmp_eq_u64 {sr(sMask,2)}, -1")
    p("s_cbranch_scc0 L_gather")
    stamp(p, "a_gath")
    for g in range(3):
        p(f"v_cvt_pk_bf16_f32 v{vACC+2*g}, v{RD+4*g}, v{RD+4*g+1}")
        p(f"v_cvt_pk_bf16_f32 v{vACC+2*g+1}, v{RD+4*g+2}, v{RD+4*g+3}")
    p(f"v_add_f32 v{vACC+6}, v{RD+8}, v{RD+9}")
    p(f"v_cvt_pk_bf16_f32 v{vACC+6}, v{vACC+6}, v{vACC+6}")
    p(f"ds_write_b32 v{t0+10}, v{vACC}")
    p(f"ds_write_b32 v{t0+10}, v{vACC+2} offset:12")
    p(f"ds_write_b32 v{t0+11}, v{vACC+4} offset:24")
    p(f"ds_write_b32 v{t0+11}, v{vACC+1} offset:4")
    p(f"ds_write_b32 v{t0+11}, v{vACC+3} offset:16")
    p(f"ds_write_b32 v{t0+11}, v{vACC+5} offset:28")
    p(f"ds_write_b16 v{t0+12}, v{vACC+6}")
    stamp(p, "a_kvf")
    p("s_waitcnt lgkmcnt(0)")
    p("s_barrier")
    KA = vACC + 64
    for hd in range(4):
        p(f"ds_read_b128 {vr(KA+8*hd,4)}, v{t0+13} offset:{hd*1088}")
        p(f"ds_read_b128 {vr(KA+8*hd+4,4)}, v{t0+13} offset:{hd*1088+16}")
    p(f"v_mul_f32 v{t0}, {hex(f2u(1e-6))}, v{vCG}")
    p(f"s_lshl_b32 s{sT2}, s{sIdx}, 12")
    p(f"s_add_u32 s{sT2}, s{sT2}, s{sA2}")
    p(f"s_add_u32 s{sT2}, s{sT2}, {88*1024}")
    for hd in range(4):
        p(f"s_waitcnt lgkmcnt({6-2*hd})")
        p(f"v_mfma_f32_32x32x16_bf16 {vr(vACC+16*hd,16)}, {vr(KA+8*hd,4)}, {vr(vPQ+8*hd,4)}, 0")
        p(f"v_mfma_f32_32x32x16_bf16 {vr(vACC+16*hd,16)}, {vr(KA+8*hd+4,4)}, {vr(vPQ+8*hd+4,4)}, {vr(vACC+16*hd,16)}")
    p("s_nop 7")
    p("s_nop 3")
    for hd in range(4):
        a = vACC + 16 * hd
        p(f"v_fma_f32 v{a+8}, v{a+8}, v{vCG}, v{t0}")
        p(f"v_rcp_f32 v{a+8}, v{a+8}")
        p("s_nop 0")
        for j in range(4):
            p(f"v_pk_mul_f32 {vr(a+2*j,2)}, {vr(a+2*j,2)}, {vr(a+8,2)} op_sel_hi:[1,0]")
        for j in range(4):
            p(f"v_cvt_pk_bf16_f32 v{a+12+j}, v{a+2*j}, v{a+2*j+1}")
        p.vm(f"buffer_store_dwordx4 {vr(a+12,4)}, v{vL16}, {sr(SRD_WS,4)}, s{sT2} offen offset:{hd*1024} sc1", "O")
    stamp(p, "a_ost")
    p.extend(b2_tr(3, 1))
    p("s_waitcnt lgkmcnt(0)")
    e = Prog(); p.extend(merge(e, b2_dma(5, 1), 1))
    p.extend(b2_tr(4, 0))
    set_flag(p, "O")
    stamp(p, "a_flag")
    p.waitvm("B5"); p.extend(b2_tr(5, 1))
    P += p.resolve(pend0)[0]

    p = Prog()
    p("L_phase2:")
    stamp(p, "p2")
    srd(p, SRD_T, sB2, 1024)
    p(f"v_and_b32 v{vT+2}, 31, v{vLane}")
    p(f"v_lshrrev_b32 v{vT+3}, 5, v{vLane}")
    p(f"v_lshlrev_b32 v{vT+4}, 1, v{vT+2}")
    p(f"v_lshl_add_u32 v{vT+4}, v{vT+3}, 30, v{vT+4}")
    p(f"s_lshl_b32 s{sT0}, s{sCT}, 7")
    p(f"buffer_load_ushort v{vB2v}, v{vT+4}, {sr(SRD_T,4)}, s{sT0} offen offset:64")
    p(f"buffer_load_ushort v{vB2v+1}, v{vT+4}, {sr(SRD_T,4)}, s{sT0} offen")
    p(f"s_lshr_b32 s{sT0}, s{sWave}, 1")
    p(f"s_lshl_b32 s{sT1}, s{sRT}, 1")
    p(f"s_add_u32 s{sT1}, s{sT1}, s{sT0}")
    p(f"s_mul_i32 s{sT2}, s{sT1}, {A2_TB}")
    p(f"v_add_u32 v{vA0}, s{sT2}, v{vL16}")
    p(f"s_xor_b32 s{sT2}, s{sT1}, 1")
    p(f"s_mul_i32 s{sT2}, s{sT2}, {A2_TB}")
    p(f"v_add_u32 v{vA1}, s{sT2}, v{vL16}")
    p(f"s_lshl_b32 s{sT1}, s{sT1}, 15")
    p(f"s_lshl_b32 s{sT2}, s{sCT}, 7")
    p(f"s_add_u32 s{sT1}, s{sT1}, s{sT2}")
    p(f"s_and_b32 s{sT2}, s{sWave}, 1")
    p(f"s_lshl_b32 s{sT2}, s{sT2}, 6")
    p(f"s_add_u32 s{sT1}, s{sT1}, s{sT2}")
    p(f"v_lshlrev_b32 v{vT+5}, 10, v{vT+2}")
    p(f"v_lshl_add_u32 v{vT+5}, v{vT+3}, 4, v{vT+5}")
    p(f"v_add_u32 v{vT+5}, s{sT1}, v{vT+5}")
    p(f"v_and_b32 v{vT+6}, 1, v{vLane}")
    p(f"v_bfe_u32 v{vT+7}, v{vLane}, 1, 1")
    p(f"v_lshl_add_u32 v{vT+6}, v{vT+7}, 2, v{vT+6}")
    p(f"v_lshlrev_b32 v{vT+6}, 7, v{vT+6}")
    p(f"s_lshr_b32 s{sT0}, s{sRT}, 1")
    p(f"s_lshl_b32 s{sT0}, s{sT0}, 4")
    p(f"s_lshl_b32 s{sT1}, s{sWave}, 1")
    p(f"s_add_u32 s{sT0}, s{sT0}, s{sT1}")
    p(f"s_lshl_b32 s{sT0}, s{sT0}, 2")
    p(f"s_and_b32 s{sT1}, s{sRT}, 1")
    p(f"s_lshl_b32 s{sT1}, s{sT1}, 1")
    p(f"s_add_u32 s{sT0}, s{sT0}, s{sT1}")
    p(f"s_lshl_b32 s{sT0}, s{sT0}, 7")
    p(f"s_add_u32 s{sT3}, s{sT0}, {FLG_OFF}")
    p(f"s_add_u32 s{sT2}, s{sT3}, {8*4*128}")
    spin(p, "hpoll", f"buffer_load_dword v{vT}, v{vT+6}, {sr(SRD_WS,4)}, s{sT2} offen sc1", 4)
    stamp(p, "hpoll")
    p("s_waitcnt lgkmcnt(0)")
    p(f"s_cmp_lg_u32 s{sWave}, 3")
    p("s_cbranch_scc1 L_nob2")
    p(f"v_lshl_or_b32 v{vB2v}, v{vB2v}, 16, v{vB2v}")
    p(f"v_lshl_or_b32 v{vB2v+1}, v{vB2v+1}, 16, v{vB2v+1}")
    p(f"v_accvgpr_write_b32 a160, v{vB2v}")
    p(f"v_accvgpr_write_b32 a164, v{vB2v+1}")
    p("L_nob2:")
    AB = 64
    NR = 12
    AHEAD = 6
    def a2load(i):
        q = Prog()
        base = i if i < 22 else i - 22
        if i == 0:
            q(f"s_mul_i32 s{sT0}, s{sWave}, {22*1024}")
        elif i == 22:
            q(f"s_lshl_b32 s{sT0}, s{sWave}, 13")
            q(f"s_add_u32 s{sT0}, s{sT0}, {88*1024}")
        elif base % 4 == 0:
            q(f"s_add_u32 s{sT0}, s{sT0}, 4096")
        r = AB + 8 * (i % NR)
        q.vm(f"buffer_load_dwordx4 {vr(r,4)}, v{vA0}, {sr(SRD_WS,4)}, s{sT0} offen offset:{(base%4)*1024} sc1", f"A{i}")
        q.vm(f"buffer_load_dwordx4 {vr(r+4,4)}, v{vA1}, {sr(SRD_WS,4)}, s{sT0} offen offset:{(base%4)*1024} sc1", f"A{i}")
        return q
    def a2mfma(i, u):
        r = AB + 8 * (i % NR)
        c = "0" if i == 0 else vr(16 * u, 16)
        return f"v_mfma_f32_32x32x16_bf16 {vr(16*u,16)}, {ar(8*i+4*(u&1),4)}, {vr(r+4*(u>>1),4)}, {c}"
    for i in range(AHEAD):
        p.extend(a2load(i))
    nxt = AHEAD
    for i in range(30):
        if nxt == 22 and i == 22 - AHEAD:
            spin(p, "opoll", f"buffer_load_dword v{vT}, v{vT+6}, {sr(SRD_WS,4)}, s{sT3} offen sc1", 4)
            stamp(p, "opoll")
            for k in range(22, 28):
                p.extend(a2load(k))
            nxt = 28
        p.waitvm(f"A{i}")
        ld = []
        if nxt < 30 and nxt - i <= AHEAD and nxt != 22:
            ld = a2load(nxt).items; nxt += 1
        for u in range(4):
            p(a2mfma(i, u))
            if u == 0:
                p.items += ld[:-1]
            if u == 2:
                p.items += ld[-1:]
    stamp(p, "p2mm")
    p(f"s_mul_i32 s{sT0}, s{sWave}, 12288")
    p(f"v_add_u32 v{vT+8}, s{sT0}, v{vL16}")
    for u in (1, 2, 3):
        p(f"s_xor_b32 s{sT1}, s{sWave}, {u}")
        p(f"s_mul_i32 s{sT1}, s{sT1}, 12288")
        p(f"v_add_u32 v{vT+8+u}, s{sT1}, v{vL16}")
    srd(p, SRD_T, sOUT, 2048 * 1024)
    p("s_barrier")
    for u in (1, 2, 3):
        for qd in range(4):
            p(f"ds_write_b128 v{vT+8+u}, {vr(16*u+4*qd,4)} offset:{(u-1)*4096+qd*1024}")
    stamp(p, "p2w")
    p("s_waitcnt lgkmcnt(0)")
    p("s_barrier")
    for u in (1, 2, 3):
        for qd in range(4):
            p(f"ds_read_b128 {vr(16*u+4*qd,4)}, v{vT+8} offset:{(u-1)*4096+qd*1024}")
    for u in (1, 2, 3):
        p(f"s_waitcnt lgkmcnt({12-4*u})")
        for j in range(8):
            p(f"v_pk_add_f32 {vr(2*j,2)}, {vr(2*j,2)}, {vr(16*u+2*j,2)}")
    stamp(p, "p2r")
    for j in range(8):
        p(f"v_cvt_pk_bf16_f32 v{16+j}, v{2*j}, v{2*j+1}")
    p("s_nop 1")
    p("v_permlane32_swap_b32 v16, v18")
    p("v_permlane32_swap_b32 v17, v19")
    p("v_permlane32_swap_b32 v20, v22")
    p("v_permlane32_swap_b32 v21, v23")
    p(f"buffer_store_dwordx4 v[16:19], v{vT+5}, {sr(SRD_T,4)}, 0 offen")
    p(f"buffer_store_dwordx4 v[20:23], v{vT+5}, {sr(SRD_T,4)}, 0 offen offset:32")
    if Cfg.stamps:
        stamp(p, "p2st")
        p("s_waitcnt vmcnt(0)")
        stamp(p, "end")
        p(f"s_memrealtime {sr(sT0+1,2)}")
        p("s_waitcnt lgkmcnt(0)")
        for i in range(24):
            p(f"v_mov_b32 v{i}, s{sSt+i}")
        p(f"v_mov_b32 v24, s{sT0+1}")
        p(f"v_mov_b32 v25, s{sT0+2}")
        p(f"s_getreg_b32 s{sT0}, hwreg(HW_REG_XCC_ID)")
        p(f"v_mov_b32 v26, s{sT0}")
        p(f"v_mov_b32 v27, 0")
        p(f"s_lshl_b32 s{sT0}, s2, 2")
        p(f"s_add_u32 s{sT0}, s{sT0}, s{sWave}")
        p(f"s_lshl_b32 s{sT0}, s{sT0}, 7")
        p(f"s_add_u32 s{sT0}, s{sT0}, {STAMP_OFF}")
        p("s_mov_b64 exec, 1")
        for i in range(7):
            p(f"buffer_store_dwordx4 {vr(4*i,4)}, v27, {sr(SRD_WS,4)}, s{sT0} offen offset:{16*i}")
    if Cfg.fixdur:
        p("s_cmp_lg_u32 s2, 0")
        p("s_cbranch_scc1 L_exit")
        p("L_fix:")
        p("s_memrealtime s[96:97]")
        p("s_waitcnt lgkmcnt(0)")
        p("s_sub_u32 s96, s96, s98")
        p(f"s_cmp_lt_u32 s96, {Cfg.fixdur}")
        p("s_cbranch_scc1 L_fix")
    p("L_exit:")
    p("s_endpgm")
    p("L_codeend:")
    P += p.resolve([])[0]
    return P


HEADER = """; Fused gated mix: hedgehog linear attention + GELU FFN, one persistent launch, 256 workgroups (one per CU).
; @launch grid=(256,1,1) block=(256,1,1) lds=163840
.amdgcn_target "amdgcn-amd-amdhsa--gfx950"
.text
.globl {k}
.p2align 8
.type {k},@function
{k}:
"""
FOOTER = """.section .rodata,"a"
.p2align 6
.amdhsa_kernel {k}
  .amdhsa_next_free_vgpr 512
  .amdhsa_next_free_sgpr 102
  .amdhsa_accum_offset 256
  .amdhsa_group_segment_fixed_size 0
  .amdhsa_kernarg_size 104
  .amdhsa_user_sgpr_count 2
  .amdhsa_user_sgpr_kernarg_segment_ptr 1
  .amdhsa_system_sgpr_workgroup_id_x 1
.end_amdhsa_kernel
"""

def emit(path):
    body = build()
    txt = HEADER.format(k=KNAME) + "\n".join(("" if l.endswith(":") or l.startswith(".") else "    ") + l for l in body) + "\n" + FOOTER.format(k=KNAME)
    open(path, "w").write(txt)

if __name__ == "__main__":
    out = sys.argv[1]
    for a in sys.argv[2:]:
        k, v = a.split("=")
        setattr(Cfg, k, int(v))
    emit(out)
```
